```python
import torch

def _softmax(x, axis=-1):
    return torch.softmax(x, dim=axis)
def _gelu(x):
    return torch.nn.functional.gelu(x, approximate="tanh")
def _silu(x):
    return torch.nn.functional.silu(x)
def _sigmoid(x):
    return torch.sigmoid(x)
def _layernorm(x, axis=-1, eps=1e-5):
    m = x.mean(dim=axis, keepdim=True)
    v = x.var(dim=axis, keepdim=True, unbiased=False)
    return (x - m) / torch.sqrt(v + eps)
def _scatter_add(tgt, idx, src, axis=0):
    return tgt.clone().index_add_(axis, idx, src)
def _segment_sum(src, seg, n):
    out = torch.zeros((n,) + src.shape[1:], dtype=src.dtype)
    return out.index_add_(0, seg, src)
def _pad(x, pw):
    flat = tuple(v for pair in reversed(pw) for v in pair)
    return torch.nn.functional.pad(x, flat)

kernel_name = 'interleave_layers__linear_attn_block__glu_gated_bilinear__prompt'

def setup_inputs():

    _w = (lambda a: (lambda t: t.to(torch.bfloat16) if t.is_floating_point() else t)(torch.as_tensor(a)))
    def _A_setup():
        B, S, D = 1, 2048, 640
        return {
            "x": _w((lambda *s: torch.randn(*s, dtype=torch.bfloat16) * 0.05)(B, S, D)),
            "wqkv": _w((lambda *s: torch.randn(*s, dtype=torch.bfloat16) * 0.05)(D, 3 * D)),
            "wo": _w((lambda *s: torch.randn(*s, dtype=torch.bfloat16) * 0.05)(D, D)),
        }
    _A_in = _A_setup()

    def _B_setup():
        B, S, D, F = 1, 2048, 640, 1728
        return {
            "x": _w((lambda *s: torch.randn(*s, dtype=torch.bfloat16) * 0.05)(B, S, D)),
            "w_gate": _w((lambda *s: torch.randn(*s, dtype=torch.bfloat16) * 0.8)(D, F) * (D ** -0.5)),
            "w_up": _w((lambda *s: torch.randn(*s, dtype=torch.bfloat16) * 0.8)(D, F) * (D ** -0.5)),
            "w_down": _w((lambda *s: torch.randn(*s, dtype=torch.bfloat16) * 0.8)(F, D) * (F ** -0.5)),
        }
    _B_in = _B_setup()

    return {
        "A_x": _A_in["x"],
        "A_wqkv": _A_in["wqkv"],
        "A_wo": _A_in["wo"],
        "B_x": _B_in["x"],
        "B_w_gate": _B_in["w_gate"],
        "B_w_up": _B_in["w_up"],
        "B_w_down": _B_in["w_down"],
    }

def reference(A_x, A_wqkv, A_wo, B_x, B_w_gate, B_w_up, B_w_down):
    def _A_ref(x, wqkv, wo):
        B, S, D = x.shape
        H = 32; Dh = D // H
        qkv = (lambda x, *d: x.permute(*d))((x @ wqkv).reshape(B, S, 3, H, Dh), 2, 0, 3, 1, 4)
        q, k, v = qkv[0], qkv[1], qkv[2]
        phi = lambda t: torch.where(t > 0, t + 1, torch.exp(t)) + 1e-6
        pq, pk = phi(q), phi(k)
        kv = torch.einsum("bhsd,bhse->bhde", pk, v)
        z = torch.einsum("bhsd->bhd", pk)
        num = torch.einsum("bhqd,bhde->bhqe", pq, kv)
        den = torch.einsum("bhqd,bhd->bhq", pq, z)[..., None] + 1e-6
        o = num / den
        return (lambda x, *d: x.permute(*d))(o, 0, 2, 1, 3).reshape(B, S, D) @ wo

    def _B_ref(x, w_gate, w_up, w_down):
        g = torch.einsum("bsd,df->bsf", x, w_gate)
        u = torch.einsum("bsd,df->bsf", x, w_up)
        h = g * u
        return torch.einsum("bsf,fd->bsd", h, w_down)

    x = A_x
    x = x + _A_ref(_layernorm(x, axis=-1), A_wqkv, A_wo)
    x = x + _B_ref(_layernorm(x, axis=-1), B_w_gate, B_w_up, B_w_down)
    x = x + _A_ref(_layernorm(x, axis=-1), A_wqkv, A_wo)
    x = x + _B_ref(_layernorm(x, axis=-1), B_w_gate, B_w_up, B_w_down)
    return x
```

```python
import re

REG_RE = re.compile(r"(?<![\w])([vas])(?:(\d+)|\[(\d+):(\d+)\])(?![\w])")
TRANS = ("v_exp_f32", "v_log_f32", "v_rcp_f32", "v_rsq_f32", "v_sqrt_f32", "v_sin_f32", "v_cos_f32")


def regs_of(tok):
    out = set()
    tok = tok.strip()
    if tok in ("vcc",):
        return {("s", "vcc")}
    if tok in ("vcc_lo", "vcc_hi"):
        return {("s", "vcc")}
    if tok == "m0":
        return {("s", "m0")}
    if tok in ("exec", "exec_lo", "exec_hi"):
        return {("s", "exec")}
    for m in REG_RE.finditer(tok):
        k = m.group(1)
        if m.group(2) is not None:
            out.add((k, int(m.group(2))))
        else:
            for i in range(int(m.group(3)), int(m.group(4)) + 1):
                out.add((k, i))
    return out


def split_ops(s):
    ops, depth, cur = [], 0, ""
    for ch in s:
        if ch == "[":
            depth += 1
        if ch == "]":
            depth -= 1
        if ch == "," and depth == 0:
            ops.append(cur.strip())
            cur = ""
        else:
            cur += ch
    if cur.strip():
        ops.append(cur.strip())
    return ops


def v(i, n=1):
    return f"v{i}" if n == 1 else f"v[{i}:{i + n - 1}]"


def a(i, n=1):
    return f"a{i}" if n == 1 else f"a[{i}:{i + n - 1}]"


def s(i, n=1):
    return f"s{i}" if n == 1 else f"s[{i}:{i + n - 1}]"


class Asm:
    def __init__(self):
        self.lines = []
        self.slot = 0
        self.valu_w = {}
        self.trans_w = {}
        self.mfma_w = {}
        self.mfma_c = {}
        self.store_r = {}
        self.valu_sw = {}
        self.m0_w = -100
        self.vmq = []
        self.lgq = []
        self.nlabel = 0
        self.n_instr = 0

    def raw(self, t):
        self.lines.append(t)

    def comment(self, t):
        self.lines.append(f"    ; {t}")

    def label(self, name):
        self.lines.append(f"{name}:")

    def newlabel(self, stem):
        self.nlabel += 1
        return f"L_{stem}_{self.nlabel}"

    def nop(self, states):
        while states > 0:
            k = min(states, 16)
            self.lines.append(f"    s_nop {k - 1}")
            self.slot += k
            self.n_instr += 1
            states -= k

    def fence(self):
        need = 0
        for d, n in ((self.valu_w, 2), (self.trans_w, 1), (self.mfma_c, 3), (self.store_r, 2), (self.valu_sw, 5)):
            for r, sl in d.items():
                need = max(need, n - (self.slot - sl - 1))
        for r, (sl, _) in self.mfma_w.items():
            need = max(need, 8 - (self.slot - sl - 1))
        need = max(need, 1 - (self.slot - self.m0_w - 1))
        if need > 0:
            self.nop(need)

    def __call__(self, text):
        text = text.strip()
        parts = text.split(None, 1)
        mn = parts[0]
        rest = parts[1] if len(parts) > 1 else ""
        ops = split_ops(rest)
        opr = [regs_of(o) for o in ops]
        is_mfma = mn.startswith("v_mfma")
        is_valu = mn.startswith("v_") and not is_mfma
        is_ds = mn.startswith("ds_")
        is_vmem = mn.startswith("buffer_") or mn.startswith("global_")
        is_lds_dma = is_vmem and re.search(r"\blds\b", rest) is not None
        reads, writes = set(), set()
        creads = set()
        if is_mfma:
            writes = opr[0]
            reads = opr[1] | opr[2]
            creads = opr[3]
        elif is_valu:
            if mn.startswith("v_cmp"):
                writes = opr[0]
                reads = set().union(*opr[1:])
            elif mn.startswith("v_permlane") and "swap" in mn:
                writes = opr[0] | opr[1]
                reads = opr[0] | opr[1]
            else:
                writes = opr[0]
                reads = set().union(*opr[1:]) if len(opr) > 1 else set()
                if mn.startswith("v_fmac") or mn.startswith("v_pk_fmac") or "_dpp" in mn or "dpp" in rest or "row_" in rest:
                    reads |= opr[0]
                if mn.startswith("v_cndmask") and len(ops) == 3:
                    reads |= {("s", "vcc")}
                if mn in ("v_add_co_u32", "v_addc_co_u32", "v_sub_co_u32"):
                    writes |= opr[1]
        elif is_ds:
            if mn.startswith("ds_read") or mn.startswith("ds_bpermute"):
                writes = opr[0]
                reads = set().union(*opr[1:])
            else:
                reads = set().union(*opr)
        elif is_vmem:
            if is_lds_dma:
                reads = set().union(*opr)
            elif "_load" in mn:
                writes = opr[0]
                reads = set().union(*opr[1:])
            else:
                reads = set().union(*opr)
        else:
            if mn.startswith("s_") and ops and not mn.startswith("s_cmp") and not mn.startswith("s_cbranch") \
                    and mn not in ("s_waitcnt", "s_barrier", "s_nop", "s_branch", "s_endpgm", "s_sleep", "s_setprio"):
                writes = opr[0]
                reads = set().union(*opr[1:]) if len(opr) > 1 else set()
            else:
                reads = set().union(*opr) if opr else set()

        need = 0

        def dist(sl):
            return self.slot - sl - 1

        vreads = {r for r in reads | creads if r[0] in "va"}
        vwrites = {r for r in writes if r[0] in "va"}
        sreads = {r for r in reads if r[0] == "s"}
        if is_mfma:
            for r in vreads:
                if r in self.valu_w:
                    need = max(need, 2 - dist(self.valu_w[r]))
            for r in reads:
                if r in self.mfma_w:
                    need = max(need, 8 - dist(self.mfma_w[r][0]))
            for r in creads:
                if r in self.mfma_w:
                    sl, d = self.mfma_w[r]
                    if d != frozenset(creads):
                        need = max(need, 6 - dist(sl))
            for r in vwrites:
                if r in self.mfma_w and r not in creads:
                    need = max(need, 6 - dist(self.mfma_w[r][0]))
        else:
            if is_valu or is_ds or is_vmem:
                for r in vreads | vwrites:
                    if r in self.mfma_w:
                        need = max(need, 8 - dist(self.mfma_w[r][0]))
            if is_valu:
                for r in vwrites:
                    if r in self.mfma_c:
                        need = max(need, 3 - dist(self.mfma_c[r]))
                    if r in self.store_r:
                        need = max(need, 2 - dist(self.store_r[r]))
                if not any(mn.startswith(t) for t in TRANS):
                    for r in vreads:
                        if r in self.trans_w:
                            need = max(need, 1 - dist(self.trans_w[r]))
                if mn.startswith("v_permlane") or "row_" in rest or "quad_perm" in rest:
                    for r in vreads:
                        if r in self.valu_w:
                            need = max(need, 2 - dist(self.valu_w[r]))
                if mn.startswith("v_readfirstlane") or mn.startswith("v_readlane"):
                    for r in vreads:
                        if r in self.valu_w:
                            need = max(need, 1 - dist(self.valu_w[r]))
                for r in sreads:
                    if r in self.valu_sw:
                        need = max(need, 2 - dist(self.valu_sw[r]))
            if is_ds or (is_vmem and not is_valu):
                for r in vwrites:
                    if r in self.store_r:
                        need = max(need, 1 - dist(self.store_r[r]))
            if is_vmem:
                for r in sreads:
                    if r in self.valu_sw:
                        need = max(need, 5 - dist(self.valu_sw[r]))
                if is_lds_dma:
                    need = max(need, 1 - dist(self.m0_w))
            if not (is_valu or is_ds or is_vmem):
                for r in sreads:
                    if r in self.valu_sw:
                        need = max(need, 1 - dist(self.valu_sw[r]))
        if need > 0:
            self.nop(need)
        self.lines.append("    " + text)
        sl = self.slot
        self.slot += 1
        self.n_instr += 1
        if is_mfma:
            d = frozenset(vwrites)
            for r in vwrites:
                self.mfma_w[r] = (sl, d)
                self.valu_w.pop(r, None)
            for r in creads:
                self.mfma_c[r] = sl
        elif is_valu:
            for r in vwrites:
                self.valu_w[r] = sl
                self.mfma_w.pop(r, None)
                if any(mn.startswith(t) for t in TRANS):
                    self.trans_w[r] = sl
                else:
                    self.trans_w.pop(r, None)
            for r in writes:
                if r[0] == "s":
                    self.valu_sw[r] = sl
        else:
            for r in writes:
                if r == ("s", "m0"):
                    self.m0_w = sl
                if r[0] == "s":
                    self.valu_sw.pop(r, None)
            if is_vmem and ("store_dwordx4" in mn or "store_dwordx3" in mn):
                for r in opr[0] if mn.startswith("buffer") else opr[1]:
                    self.store_r[r] = sl

    def vm(self, text, tag=None, maybe=False):
        self(text)
        self.vmq.append((tag, maybe))

    def lg(self, text, tag=None):
        self(text)
        self.lgq.append(tag)

    def _vm_n(self, tags):
        idx = -1
        for i, (t, _) in enumerate(self.vmq):
            if t in tags:
                idx = i
        if idx < 0:
            return None
        n = sum(1 for (t, mb) in self.vmq[idx + 1:] if not mb)
        self.vmq = self.vmq[idx + 1:]
        return min(n, 63)

    def _lg_n(self, tags):
        idx = -1
        for i, t in enumerate(self.lgq):
            if t in tags:
                idx = i
        if idx < 0:
            return None
        n = len(self.lgq) - idx - 1
        self.lgq = self.lgq[idx + 1:]
        return min(n, 15)

    def wait(self, vm=(), lg=()):
        if isinstance(vm, (str, tuple)) and not isinstance(vm, list):
            vm = [vm] if vm != () else []
        if isinstance(lg, (str, tuple)) and not isinstance(lg, list):
            lg = [lg] if lg != () else []
        nv = self._vm_n(vm) if vm else None
        nl = self._lg_n(lg) if lg else None
        parts = []
        if nv is not None:
            parts.append(f"vmcnt({nv})")
        if nl is not None:
            parts.append(f"lgkmcnt({nl})")
        if parts:
            self("s_waitcnt " + " ".join(parts))

    def wait_all(self, vm=True, lg=True):
        parts = []
        if vm:
            parts.append("vmcnt(0)")
            self.vmq = []
        if lg:
            parts.append("lgkmcnt(0)")
            self.lgq = []
        self("s_waitcnt " + " ".join(parts))

    def text(self):
        return "\n".join(self.lines) + "\n"
```

```python
import sys
from asmdsl import Asm, v, a, s

NAME = "interleave_layers__linear_attn_block__glu_gated_bilinear__prompt"
STAMPS = "--stamps" in sys.argv
OPT = {}
for arg in sys.argv[1:]:
    if arg.startswith("-D"):
        k, _, val = arg[2:].partition("=")
        OPT[k] = int(val) if val else 1

KB = 1024
CNT = 0
STAMP = 16 * KB
CS1 = 128 * KB
CS3 = CS1 + 16 * 20 * 512
ST = CS3 + 32 * 20 * 512
STSZ = 128 * KB
KVP = ST + 4 * STSZ
KVSZ = 1024 * KB
WF1 = KVP + 2 * KVSZ
WF2 = WF1 + 16 * 160 * KB
WF3 = WF2 + 8 * 100 * KB
WF4 = WF3 + 16 * 280 * KB
XF = WF4 + 8 * 270 * KB + 8 * KB
XSZ = 128 * 20 * KB
OF = XF + 4 * XSZ
HF = OF + 2 * XSZ
HSZ = 128 * 54 * KB
WS_END = HF + 2 * HSZ
LAYOUT = dict(CNT=CNT, STAMP=STAMP, CS1=CS1, CS3=CS3, ST=ST, STSZ=STSZ, KVP=KVP, KVSZ=KVSZ, WF1=WF1, WF2=WF2,
              WF3=WF3, WF4=WF4, XF=XF, XSZ=XSZ, OF=OF, HF=HF, HSZ=HSZ, WS_END=WS_END)

RING = 144 * KB
NRG = RING // (8 * KB)
EARLY = 12
RED = 96 * KB
KVS = 96 * KB
KVF = KVS + 36 * KB
TBL = 156 * KB
CST = TBL + 1024
LDS_BYTES = 160 * KB

SWS, SAUX, SPF = 4, 8, 12
sRB, sC, sWV, sCT = 16, 17, 18, 19
P_X0, P_WQKV, P_WO, P_BX, P_WG, P_WU, P_WD, P_OUT, P_DBG, P_WS = 20, 22, 24, 26, 28, 30, 32, 34, 36, 38
sRH, sLAYER, sWLDS, sGOFF, sXI, sRTG, sCTG, sITER = 40, 41, 42, 43, 44, 45, 46, 47
sAM, sWM = 48, 50
sT0, sT1, sT2, sT3, sT4, sT5 = 52, 53, 54, 55, 56, 57
sXOFF = 58
sPFOFF = 62
sEPS6 = 64
sM8 = 66
sMG0 = 68
sRED = 70
sR16 = 71
sRA = 72
sRT = 74
sSIDX = 76
sJ = 78
sX14 = 94
NSGPR = 96

vLANE, vL16, vDMA, vLD1, vLD2, vCNT, vKVS, vKVD, vSTAMP, vT16 = range(10)
T = list(range(10, 20))
XR = 20

g = Asm()


def stamp(i):
    if not STAMPS:
        return
    g(f"s_memrealtime {s(sRT, 2)}")
    g.wait_all(vm=False)
    g(f"s_add_u32 {s(sT5)}, {s(sSIDX)}, {i}")
    g("s_nop 0")
    g(f"v_writelane_b32 {v(vSTAMP)}, {s(sRT)}, {s(sT5)}")


def lds_base(addr):
    return (vL16, vLD1, vLD2)[addr >> 16], addr & 0xFFFF


def begin_skip():
    return (g.slot, dict(g.valu_w), dict(g.mfma_w), dict(g.mfma_c), dict(g.store_r), dict(g.trans_w), dict(g.valu_sw))


def end_skip(sv):
    pre = sv[0]
    for d in (g.valu_w, g.mfma_c, g.store_r, g.trans_w, g.valu_sw):
        for r in d:
            if d[r] >= pre:
                d[r] = pre - 1
    for r in g.mfma_w:
        if g.mfma_w[r][0] >= pre:
            g.mfma_w[r] = (pre - 1, g.mfma_w[r][1])
    for cur, old in ((g.valu_w, sv[1]), (g.mfma_w, sv[2]), (g.mfma_c, sv[3]), (g.store_r, sv[4]), (g.trans_w, sv[5]),
                     (g.valu_sw, sv[6])):
        for r in old:
            if r not in cur:
                cur[r] = old[r]
    if g.m0_w >= pre:
        g.m0_w = pre - 1
    g.slot = pre


def dma_group(G, srd=SWS, maybe=False):
    g(f"s_add_u32 m0, {s(sWLDS)}, {(G % NRG) * 8 * KB}")
    g.vm(f"buffer_load_dwordx4 {v(vDMA)}, {s(srd, 4)}, {s(sGOFF)} offen sc1 lds", tag=("G", G), maybe=maybe)
    g.vm(f"buffer_load_dwordx4 {v(vDMA)}, {s(srd, 4)}, {s(sGOFF)} offen offset:1024 sc1 lds", tag=("G", G), maybe=maybe)
    g(f"s_add_u32 {s(sGOFF)}, {s(sGOFF)}, {8 * KB}")


def handoff(arrive_mask, wait_mask, target, mid=None, pre_arrive=None):
    def mask(m):
        return s(m[0], 2) if isinstance(m, tuple) else str(m)
    g.wait_all()
    g("s_barrier")
    l1, l2, lp, lo = g.newlabel("noarr"), g.newlabel("nopoll"), g.newlabel("poll"), g.newlabel("pollout")
    g(f"s_cmp_lg_u32 {s(sWV)}, 0")
    g(f"s_cbranch_scc1 {l1}")
    sv = begin_skip()
    if pre_arrive:
        pre_arrive()
    g(f"v_mov_b32 {v(T[9])}, 1")
    g(f"s_mov_b64 exec, {mask(arrive_mask)}")
    g(f"buffer_atomic_add {v(T[9])}, {v(vCNT)}, {s(SWS, 4)}, 0 offen sc1")
    g("s_mov_b64 exec, -1")
    end_skip(sv)
    g.label(l1)
    if mid:
        mid()
    g(f"s_cmp_lg_u32 {s(sWV)}, 0")
    g(f"s_cbranch_scc1 {l2}")
    sv = begin_skip()
    g(f"s_mov_b64 exec, {mask(wait_mask)}")
    g(f"s_mov_b32 {s(sITER)}, 0")
    g.label(lp)
    g(f"buffer_load_dword {v(T[9])}, {v(vCNT)}, {s(SWS, 4)}, 0 offen sc1")
    g(f"s_add_u32 {s(sITER)}, {s(sITER)}, 1")
    g(f"s_cmp_gt_u32 {s(sITER)}, 0x40000")
    g(f"s_cbranch_scc1 {lo}")
    g("s_waitcnt vmcnt(0)")
    g(f"v_cmp_gt_u32 vcc, {s(target)}, {v(T[9])}")
    g("s_nop 0")
    g(f"s_cbranch_vccnz {lp}")
    g.label(lo)
    g("s_mov_b64 exec, -1")
    end_skip(sv)
    g.label(l2)
    g("s_barrier")


def reduce_g(regs, tmps):
    for sw in ("v_permlane16_swap_b32", "v_permlane32_swap_b32"):
        for r, t in zip(regs, tmps):
            g(f"v_mov_b32 {v(t)}, {v(r)}")
        for r, t in zip(regs, tmps):
            g(f"{sw} {v(r)}, {v(t)}")
        for r, t in zip(regs, tmps):
            g(f"v_add_f32 {v(r)}, {v(r)}, {v(t)}")


def prologue():
    g(f"s_cmp_ge_u32 s2, 256")
    g("s_cbranch_scc1 L_end")
    g(f"s_load_dwordx16 {s(20, 16)}, s[0:1], 0")
    g(f"s_load_dwordx4 {s(36, 4)}, s[0:1], 64")
    g(f"s_and_b32 {s(sRB)}, s2, 7")
    g(f"s_lshl_b32 {s(sRB)}, {s(sRB)}, 1")
    g(f"s_bfe_u32 s3, s2, 0x10003")
    g(f"s_add_u32 {s(sRB)}, {s(sRB)}, s3")
    g(f"s_lshr_b32 {s(sC)}, s2, 4")
    g(f"s_lshr_b32 {s(sCT)}, {s(sC)}, 1")
    g(f"s_and_b32 {s(sRH)}, {s(sC)}, 1")
    g(f"v_lshrrev_b32 {v(T[0])}, 6, v0")
    g(f"v_lshlrev_b32 {v(vT16)}, 4, v0")
    g(f"v_readfirstlane_b32 {s(sWV)}, {v(T[0])}")
    g(f"v_mov_b32 {v(T[1])}, v0")
    g(f"v_and_b32 {v(vLANE)}, 63, v0")
    g(f"v_lshlrev_b32 {v(vL16)}, 4, {v(vLANE)}")
    g(f"s_lshl_b32 {s(sWLDS)}, {s(sWV)}, 11")
    g(f"v_add_u32 {v(vDMA)}, {s(sWLDS)}, {v(vL16)}")
    g(f"v_add_u32 {v(vLD1)}, 0x10000, {v(vL16)}")
    g(f"v_add_u32 {v(vLD2)}, 0x20000, {v(vL16)}")
    g(f"v_mov_b32 {v(vSTAMP)}, 0")
    g(f"s_mov_b32 {s(sSIDX)}, 0")
    g(f"s_mov_b32 {s(sLAYER)}, 0")
    g(f"s_mov_b32 {s(sXI)}, 0")
    g(f"s_mov_b32 {s(sRTG)}, 16")
    g(f"s_mov_b32 {s(sCTG)}, 32")
    g(f"s_mov_b64 {s(sAM, 2)}, 3")
    g(f"s_mov_b64 {s(sWM, 2)}, 7")
    g(f"s_mov_b32 {s(sEPS6)}, 0x358637bd")
    g(f"s_mov_b32 {s(sEPS6 + 1)}, 0x358637bd")
    g(f"s_mov_b32 {s(sM8)}, 0x00ff00ff")
    g(f"s_mov_b32 {s(sM8 + 1)}, 0x00ff00ff")
    g(f"s_mov_b64 {s(sMG0, 2)}, 0xffff")
    g(f"s_lshl_b32 {s(sRA)}, {s(sRB)}, 3")
    g(f"s_lshl_b32 s3, {s(sRH)}, 2")
    g(f"s_add_u32 {s(sR16)}, {s(sRA)}, s3")
    g(f"s_add_u32 {s(sR16)}, {s(sR16)}, {s(sWV)}")
    g(f"s_lshl_b32 s3, {s(sWV)}, 1")
    g(f"s_add_u32 {s(sRA)}, {s(sRA)}, s3")
    g(f"s_lshl_b32 s3, {s(sRB)}, 8")
    g(f"v_mov_b32 {v(vCNT)}, s3")
    g(f"s_lshl_b32 s3, {s(sC)}, 8")
    g(f"s_add_u32 s3, s3, 4096")
    g(f"v_writelane_b32 {v(vCNT)}, s3, 1")
    g(f"s_xor_b32 s3, s3, 256")
    g(f"v_writelane_b32 {v(vCNT)}, s3, 2")
    t, head, rem, e, dq, es, ed, x0, x1 = T[1], T[2], T[3], T[4], T[5], T[6], T[7], T[8], T[9]
    g(f"v_cmp_le_u32 vcc, 100, {v(t)}")
    g(f"v_cndmask_b32 {v(head)}, 0, 1, vcc")
    g(f"v_mul_u32_u24 {v(x0)}, 100, {v(head)}")
    g(f"v_sub_u32 {v(rem)}, {v(t)}, {v(x0)}")
    g(f"v_mul_u32_u24 {v(e)}, 205, {v(rem)}")
    g(f"v_lshrrev_b32 {v(e)}, 10, {v(e)}")
    g(f"v_mul_u32_u24 {v(x0)}, 5, {v(e)}")
    g(f"v_sub_u32 {v(dq)}, {v(rem)}, {v(x0)}")
    g(f"v_mad_u32_u24 {v(e)}, {v(head)}, 20, {v(e)}")
    g(f"v_mad_u32_u24 {v(dq)}, {v(head)}, 5, {v(dq)}")
    g(f"v_add_u32 {v(es)}, 8, {v(e)}")
    g(f"v_mov_b32 {v(ed)}, {v(e)}")
    g(f"v_subrev_u32 {v(x0)}, 200, {v(t)}")
    g(f"v_cmp_le_u32 vcc, 205, {v(t)}")
    g(f"v_cndmask_b32 {v(x1)}, 48, 49, vcc")
    g(f"v_cmp_le_u32 vcc, 200, {v(t)}")
    g(f"v_cndmask_b32 {v(dq)}, {v(dq)}, {v(x0)}, vcc")
    g(f"v_cndmask_b32 {v(es)}, {v(es)}, 0, vcc")
    g(f"v_cndmask_b32 {v(ed)}, {v(ed)}, {v(x1)}, vcc")
    g(f"v_cmp_le_u32 vcc, 210, {v(t)}")
    g(f"v_cndmask_b32 {v(dq)}, {v(dq)}, 0, vcc")
    g(f"v_cndmask_b32 {v(ed)}, {v(ed)}, 64, vcc")
    g(f"v_lshrrev_b32 {v(x0)}, 2, {v(dq)}")
    g(f"v_lshrrev_b32 {v(x1)}, 4, {v(es)}")
    g(f"v_mad_u32_u24 {v(x0)}, {v(x0)}, 3, {v(x1)}")
    g(f"v_lshlrev_b32 {v(vKVS)}, 10, {v(x0)}")
    g(f"v_and_b32 {v(x0)}, 3, {v(dq)}")
    g(f"v_lshlrev_b32 {v(x0)}, 8, {v(x0)}")
    g(f"v_and_b32 {v(x1)}, 15, {v(es)}")
    g(f"v_lshl_add_u32 {v(x1)}, {v(x1)}, 4, {v(x0)}")
    g(f"v_add_u32 {v(vKVS)}, {v(vKVS)}, {v(x1)}")
    g(f"v_add_u32 {v(vKVS)}, {KVS}, {v(vKVS)}")
    g(f"v_lshrrev_b32 {v(x1)}, 4, {v(ed)}")
    g(f"v_lshlrev_b32 {v(vKVD)}, 11, {v(x1)}")
    g(f"v_lshrrev_b32 {v(x1)}, 3, {v(dq)}")
    g(f"v_lshl_add_u32 {v(vKVD)}, {v(x1)}, 10, {v(vKVD)}")
    g(f"v_add_u32 {v(vKVD)}, {v(vKVD)}, {v(x0)}")
    g(f"v_and_b32 {v(x1)}, 15, {v(ed)}")
    g(f"v_lshl_add_u32 {v(vKVD)}, {v(x1)}, 4, {v(vKVD)}")
    g(f"v_bfe_u32 {v(x1)}, {v(dq)}, 2, 1")
    g(f"v_lshl_add_u32 {v(vKVD)}, {v(x1)}, 3, {v(vKVD)}")
    g(f"v_add_u32 {v(vKVD)}, {KVF}, {v(vKVD)}")
    g("s_waitcnt lgkmcnt(0)")
    for srd in (SWS, SPF):
        g(f"s_mov_b32 {s(srd)}, {s(P_WS)}")
        g(f"s_and_b32 {s(srd + 1)}, {s(P_WS + 1)}, 0xffff")
        g(f"s_mov_b32 {s(srd + 2)}, {WS_END}")
        g(f"s_mov_b32 {s(srd + 3)}, 0x20000")
    stamp(0)


def set_aux(ptr, nbytes):
    g(f"s_mov_b32 {s(SAUX)}, {s(ptr)}")
    g(f"s_and_b32 {s(SAUX + 1)}, {s(ptr + 1)}, 0xffff")
    g(f"s_mov_b32 {s(SAUX + 2)}, {nbytes}")
    g(f"s_mov_b32 {s(SAUX + 3)}, 0x20000")


def prep():
    l0 = g.newlabel("noinit")
    g(f"s_or_b32 s3, s2, {s(sWV)}")
    g(f"s_cmp_lg_u32 s3, 0")
    g(f"s_cbranch_scc1 {l0}")
    sv = begin_skip()
    set_aux(P_DBG, 256)
    g(f"v_lshlrev_b32 {v(T[0])}, 8, {v(vLANE)}")
    g(f"v_mov_b32 {v(T[1])}, 0")
    g(f"s_mov_b64 exec, 0xffffffff")
    g(f"buffer_store_dword {v(T[1])}, {v(T[0])}, {s(SWS, 4)}, 0 offen sc1")
    g("s_waitcnt vmcnt(0)")
    g(f"v_mov_b32 {v(T[2])}, 1")
    g(f"s_mov_b64 exec, 1")
    g(f"buffer_store_dword {v(T[2])}, {v(T[1])}, {s(SAUX, 4)}, 0 offen sc1")
    g("s_mov_b64 exec, -1")
    end_skip(sv)
    g.label(l0)

    set_aux(P_X0, 2048 * 1280)
    XL = 40
    g(f"v_and_b32 {v(T[0])}, 15, {v(vLANE)}")
    g(f"v_mul_u32_u24 {v(T[0])}, 1280, {v(T[0])}")
    g(f"v_lshrrev_b32 {v(T[1])}, 4, {v(vLANE)}")
    g(f"v_lshl_add_u32 {v(T[0])}, {v(T[1])}, 3, {v(T[0])}")
    g(f"s_mul_i32 {s(sT0)}, {s(sR16)}, {16 * 1280}")
    g(f"s_mul_i32 {s(sT1)}, {s(sCT)}, 160")
    g(f"s_add_u32 {s(sT0)}, {s(sT0)}, {s(sT1)}")
    for b in range(5):
        g.vm(f"buffer_load_dwordx2 {v(XL + 2 * b, 2)}, {v(T[0])}, {s(SAUX, 4)}, {s(sT0)} offen offset:{32 * b}", tag="x0")

    jTy0, jT0, jTy1, jT1, jSlot, jTy, jT, jRS, jB, jA, jBb, jC = [sJ + i for i in range(12)]
    rD, rS, rN, rC = sT0, sT1, sT2, sT3
    R0 = [sXOFF, sXOFF + 1, sXOFF + 2, sXOFF + 3]
    R1 = [sJ + 12, sJ + 13, sJ + 14, sJ + 15]
    lw1, lw2, lw3, ldone = [g.newlabel(x) for x in ("w1", "w2", "w3", "jobs")]
    g(f"s_mov_b32 {s(jTy1)}, 0")
    g(f"s_mov_b32 {s(jT1)}, 0")
    g(f"s_cmp_eq_u32 {s(sWV)}, 1")
    g(f"s_cbranch_scc1 {lw1}")
    g(f"s_cmp_eq_u32 {s(sWV)}, 2")
    g(f"s_cbranch_scc1 {lw2}")
    g(f"s_cmp_eq_u32 {s(sWV)}, 3")
    g(f"s_cbranch_scc1 {lw3}")
    g(f"s_mov_b32 {s(jTy0)}, 1")
    g(f"s_mov_b32 {s(jT0)}, {s(sRB)}")
    g(f"s_branch {ldone}")
    g.label(lw1)
    g(f"s_mov_b32 {s(jTy0)}, 1")
    g(f"s_add_u32 {s(jT0)}, {s(sRB)}, 16")
    g(f"s_cmp_lt_u32 {s(sRB)}, 4")
    g(f"s_cbranch_scc1 {ldone}")
    g(f"s_mov_b32 {s(jTy0)}, 3")
    g(f"s_mov_b32 {s(jTy1)}, 4")
    g(f"s_add_u32 {s(jT0)}, {s(sRB)}, 12")
    g(f"s_mov_b32 {s(jT1)}, {s(jT0)}")
    g(f"s_cmp_lt_u32 {s(sRB)}, 8")
    g(f"s_cbranch_scc1 {ldone}")
    g(f"s_mov_b32 {s(jTy0)}, 2")
    g(f"s_mov_b32 {s(jTy1)}, 0")
    g(f"s_lshl_b32 {s(jT0)}, {s(sRH)}, 3")
    g(f"s_add_u32 {s(jT0)}, {s(jT0)}, {s(sRB)}")
    g(f"s_sub_u32 {s(jT0)}, {s(jT0)}, 8")
    g(f"s_branch {ldone}")
    g.label(lw2)
    g(f"s_mov_b32 {s(jTy0)}, 3")
    g(f"s_mov_b32 {s(jTy1)}, 4")
    g(f"s_mov_b32 {s(jT0)}, {s(sRB)}")
    g(f"s_mov_b32 {s(jT1)}, {s(sRB)}")
    g(f"s_branch {ldone}")
    g.label(lw3)
    g(f"s_mov_b32 {s(jTy0)}, 5")
    g(f"s_lshl_b32 {s(jT0)}, {s(sRH)}, 4")
    g(f"s_add_u32 {s(jT0)}, {s(jT0)}, {s(sRB)}")
    g(f"s_mov_b32 {s(jTy1)}, 5")
    g(f"s_add_u32 {s(jT1)}, {s(jT0)}, 32")
    g(f"s_cmp_lt_u32 {s(jT0)}, 22")
    g(f"s_cbranch_scc1 {ldone}")
    g(f"s_mov_b32 {s(jTy1)}, 2")
    g(f"s_sub_u32 {s(jT1)}, {s(jT0)}, 6")
    g(f"s_cmp_lt_u32 {s(jT0)}, 26")
    g(f"s_cbranch_scc1 {ldone}")
    g(f"s_mov_b32 {s(jTy1)}, 0")
    g.label(ldone)

    cc, r4, vo, x0, x1 = T[2], T[3], T[4], T[5], T[6]
    g(f"v_and_b32 {v(cc)}, 15, {v(vLANE)}")
    g(f"v_lshrrev_b32 {v(r4)}, 4, {v(vLANE)}")
    g(f"s_mov_b32 {s(jSlot)}, 0")
    g(f"s_mov_b32 {s(jTy)}, {s(jTy0)}")
    g(f"s_mov_b32 {s(jT)}, {s(jT0)}")
    lloop, lt1, lt2, lt3, lt5, lkx, lissue, lnext, lsh = [g.newlabel(x) for x in
                                                         ("jloop", "t1", "t2", "t3", "t5", "kx", "issue", "jnext", "sh")]
    g.fence()
    g.label(lloop)
    g(f"s_mov_b32 {s(rN)}, 0")
    g(f"s_mov_b32 {s(rD)}, 0")
    g(f"s_mov_b32 {s(rS)}, 1024")
    g(f"s_mov_b32 {s(rC)}, -1")
    g(f"s_cmp_eq_u32 {s(jTy)}, 0")
    g(f"s_cbranch_scc1 {lnext}")
    g(f"s_cmp_eq_u32 {s(jTy)}, 1")
    g(f"s_cbranch_scc1 {lt1}")
    g(f"s_cmp_eq_u32 {s(jTy)}, 2")
    g(f"s_cbranch_scc1 {lt2}")
    g(f"s_cmp_eq_u32 {s(jTy)}, 5")
    g(f"s_cbranch_scc1 {lt5}")
    g.label(lt3)
    g(f"s_cmp_eq_u32 {s(jTy)}, 3")
    g(f"s_cselect_b32 {s(SAUX)}, {s(P_WG)}, {s(P_WU)}")
    g(f"s_cselect_b32 {s(SAUX + 1)}, {s(P_WG + 1)}, {s(P_WU + 1)}")
    g(f"s_and_b32 {s(SAUX + 1)}, {s(SAUX + 1)}, 0xffff")
    g(f"s_mov_b32 {s(SAUX + 2)}, {640 * 3456}")
    g(f"s_mov_b32 {s(SAUX + 3)}, 0x20000")
    g(f"s_mov_b32 {s(jRS)}, 3456")
    g(f"s_mov_b32 {s(rN)}, 7")
    g(f"s_mov_b32 {s(rS)}, 2048")
    g(f"s_sub_u32 s3, {s(jTy)}, 3")
    g(f"s_mul_i32 {s(rD)}, {s(sC)}, 20")
    g(f"s_add_u32 {s(rD)}, {s(rD)}, {s(jT)}")
    g(f"s_mul_i32 {s(rD)}, {s(rD)}, 14")
    g(f"s_add_u32 {s(rD)}, {s(rD)}, s3")
    g(f"s_lshl_b32 {s(rD)}, {s(rD)}, 10")
    g(f"s_add_u32 {s(rD)}, {s(rD)}, {WF3}")
    g(f"s_lshl_b32 {s(rC)}, {s(sC)}, 1")
    g(f"s_add_u32 {s(rC)}, {s(rC)}, s3")
    g(f"s_mul_i32 {s(rC)}, {s(rC)}, 20")
    g(f"s_add_u32 {s(rC)}, {s(rC)}, {s(jT)}")
    g(f"s_lshl_b32 {s(rC)}, {s(rC)}, 9")
    g(f"s_add_u32 {s(rC)}, {s(rC)}, {CS3}")
    g(f"s_cmp_eq_u32 {s(sC)}, 15")
    g(f"s_cselect_b32 s3, 4, 14")
    g(f"s_cselect_b32 {s(sT4)}, 8, 0")
    g(f"v_subrev_u32 {v(x0)}, {s(sT4)}, {v(cc)}")
    g(f"v_cmp_le_u32 vcc, 12, {v(cc)}")
    g(f"v_cndmask_b32 {v(x0)}, {v(cc)}, {v(x0)}, vcc")
    g(f"v_lshlrev_b32 {v(vo)}, 4, {v(x0)}")
    g(f"s_mul_i32 {s(sT4)}, {s(sC)}, 224")
    g(f"v_add_u32 {v(vo)}, {s(sT4)}, {v(vo)}")
    g(f"v_bfrev_b32 {v(x1)}, 1")
    g(f"v_cmp_gt_u32 {s(sT4, 2)}, s3, {v(cc)}")
    g(f"v_cmp_le_u32 vcc, 12, {v(cc)}")
    g(f"s_or_b64 vcc, vcc, {s(sT4, 2)}")
    g(f"v_cndmask_b32 {v(vo)}, {v(x1)}, {v(vo)}, vcc")
    g(f"v_cmp_le_u32 vcc, 14, {v(cc)}")
    g(f"v_cndmask_b32 {v(vo)}, {v(vo)}, {v(x1)}, vcc")
    g(f"s_branch {lkx}")
    g.label(lt1)
    set_aux(P_WQKV, 640 * 3840)
    g(f"s_mov_b32 {s(jRS)}, 3840")
    g(f"s_mov_b32 {s(rN)}, 8")
    g(f"s_mul_i32 {s(rC)}, {s(sC)}, 20")
    g(f"s_add_u32 {s(rC)}, {s(rC)}, {s(jT)}")
    g(f"s_lshl_b32 {s(rD)}, {s(rC)}, 13")
    g(f"s_add_u32 {s(rD)}, {s(rD)}, {WF1}")
    g(f"s_lshl_b32 {s(rC)}, {s(rC)}, 9")
    g(f"s_add_u32 {s(rC)}, {s(rC)}, {CS1}")
    g(f"v_mul_u32_u24 {v(x0)}, 205, {v(cc)}")
    g(f"v_lshrrev_b32 {v(x0)}, 10, {v(x0)}")
    g(f"v_mul_u32_u24 {v(x1)}, 5, {v(x0)}")
    g(f"v_sub_u32 {v(vo)}, {v(cc)}, {v(x1)}")
    g(f"v_lshlrev_b32 {v(vo)}, 4, {v(vo)}")
    g(f"v_add_u32 {v(x1)}, 1, {v(x0)}")
    g(f"v_cmp_eq_u32 vcc, 2, {v(x0)}")
    g(f"v_cndmask_b32 {v(x1)}, {v(x1)}, 0, vcc")
    g(f"s_movk_i32 s3, 1280")
    g(f"v_mad_u32_u24 {v(vo)}, {v(x1)}, s3, {v(vo)}")
    g(f"s_mul_i32 s3, {s(sC)}, 80")
    g(f"v_add_u32 {v(vo)}, s3, {v(vo)}")
    g(f"v_bfrev_b32 {v(x1)}, 1")
    g(f"v_cmp_eq_u32 vcc, 15, {v(cc)}")
    g(f"v_cndmask_b32 {v(vo)}, {v(vo)}, {v(x1)}, vcc")
    g.label(lkx)
    g(f"s_lshr_b32 {s(jB)}, {s(jT)}, 1")
    g(f"s_mul_i32 {s(jB)}, {s(jB)}, 80")
    g(f"s_and_b32 s3, {s(jT)}, 1")
    g(f"s_lshl_b32 s3, s3, 5")
    g(f"s_add_u32 {s(jB)}, {s(jB)}, s3")
    g(f"s_mov_b32 {s(jA)}, 8")
    g(f"s_mov_b32 {s(jBb)}, 4")
    g(f"s_mov_b32 {s(jC)}, 16")
    g(f"s_cmp_lt_u32 {s(jT)}, 16")
    g(f"s_cbranch_scc1 {lissue}")
    g(f"s_sub_u32 {s(jB)}, {s(jT)}, 16")
    g(f"s_mul_i32 {s(jB)}, {s(jB)}, 160")
    g(f"s_add_u32 {s(jB)}, {s(jB)}, 64")
    g(f"s_mov_b32 {s(jA)}, 80")
    g(f"s_mov_b32 {s(jBb)}, 8")
    g(f"s_mov_b32 {s(jC)}, 4")
    g(f"s_branch {lissue}")
    g.label(lt2)
    set_aux(P_WO, 640 * 1280)
    g(f"s_mul_i32 {s(rD)}, {s(sCT)}, 20")
    g(f"s_add_u32 {s(rD)}, {s(rD)}, {s(jT)}")
    g(f"s_mul_i32 {s(rD)}, {s(rD)}, {5 * KB}")
    g(f"s_add_u32 {s(rD)}, {s(rD)}, {WF2}")
    g(f"s_mul_i32 {s(jB)}, {s(jT)}, 40")
    g(f"s_mov_b32 {s(jA)}, 8")
    g(f"s_mov_b32 {s(jBb)}, 4")
    g(f"s_mov_b32 {s(jC)}, 16")
    g(f"s_cmp_lt_u32 {s(jT)}, 16")
    g(f"s_cbranch_scc1 {lsh}")
    g(f"s_sub_u32 {s(jB)}, {s(jT)}, 16")
    g(f"s_mul_i32 {s(jB)}, {s(jB)}, 160")
    g(f"s_add_u32 {s(jB)}, {s(jB)}, 32")
    g(f"s_mov_b32 {s(jA)}, 80")
    g(f"s_mov_b32 {s(jBb)}, 40")
    g(f"s_mov_b32 {s(jC)}, 4")
    g(f"s_branch {lsh}")
    g.label(lt5)
    set_aux(P_WD, 1728 * 1280)
    g(f"s_mul_i32 {s(rD)}, {s(sCT)}, 54")
    g(f"s_add_u32 {s(rD)}, {s(rD)}, {s(jT)}")
    g(f"s_mul_i32 {s(rD)}, {s(rD)}, {5 * KB}")
    g(f"s_add_u32 {s(rD)}, {s(rD)}, {WF4}")
    g(f"s_mul_i32 s3, {s(jT)}, 171")
    g(f"s_lshr_b32 s3, s3, 9")
    g(f"s_mul_i32 {s(jB)}, s3, 16")
    g(f"s_lshl_b32 s3, {s(jT)}, 5")
    g(f"s_add_u32 {s(jB)}, {s(jB)}, s3")
    g(f"s_mov_b32 {s(jA)}, 8")
    g(f"s_mov_b32 {s(jBb)}, 4")
    g(f"s_mov_b32 {s(jC)}, 16")
    g(f"s_cmp_lt_u32 {s(jT)}, 46")
    g(f"s_cbranch_scc1 {lsh}")
    g(f"s_sub_u32 {s(jB)}, {s(jT)}, 46")
    g(f"s_mul_i32 {s(jB)}, {s(jB)}, 224")
    g(f"s_add_u32 {s(jB)}, {s(jB)}, 96")
    g(f"s_cmp_eq_u32 {s(jT)}, 53")
    g(f"s_cselect_b32 {s(jA)}, 48, 112")
    g(f"s_mov_b32 {s(jBb)}, 8")
    g(f"s_mov_b32 {s(jC)}, 4")
    g.label(lsh)
    g(f"s_mov_b32 {s(jRS)}, 1280")
    g(f"s_mov_b32 {s(rN)}, 5")
    g(f"s_mul_i32 s3, {s(sCT)}, 160")
    g(f"v_lshlrev_b32 {v(vo)}, 4, {v(cc)}")
    g(f"v_add_u32 {v(vo)}, s3, {v(vo)}")
    g(f"v_bfrev_b32 {v(x1)}, 1")
    g(f"v_cmp_le_u32 vcc, 10, {v(cc)}")
    g(f"v_cndmask_b32 {v(vo)}, {v(vo)}, {v(x1)}, vcc")
    g.fence()
    g.label(lissue)
    g(f"v_mad_u32_u24 {v(vo)}, {v(r4)}, {s(jRS)}, {v(vo)}")
    for r in (jB, jA, jBb, jC):
        g(f"s_mul_i32 {s(r)}, {s(r)}, {s(jRS)}")
    g(f"s_lshl_b32 {s(sT4)}, {s(sWV)}, 14")
    g(f"s_lshl_b32 s3, {s(jSlot)}, 13")
    g(f"s_add_u32 {s(sT4)}, {s(sT4)}, s3")
    for i in range(8):
        g(f"s_mov_b32 s3, {s(jB)}")
        if i & 2:
            g(f"s_add_u32 s3, s3, {s(jA)}")
        if i & 1:
            g(f"s_add_u32 s3, s3, {s(jBb)}")
        if i & 4:
            g(f"s_add_u32 s3, s3, {s(jC)}")
        g(f"s_add_u32 m0, {s(sT4)}, {i * 1024}")
        g(f"buffer_load_dwordx4 {v(vo)}, {s(SAUX, 4)}, s3 offen lds")
    g.label(lnext)
    g(f"s_cmp_eq_u32 {s(jSlot)}, 0")
    lsecond = g.newlabel("jsecond")
    g(f"s_cbranch_scc0 {lsecond}")
    for d, r in zip(R0, (rD, rS, rN, rC)):
        g(f"s_mov_b32 {s(d)}, {s(r)}")
    g(f"s_mov_b32 {s(jSlot)}, 1")
    g(f"s_mov_b32 {s(jTy)}, {s(jTy1)}")
    g(f"s_mov_b32 {s(jT)}, {s(jT1)}")
    g.fence()
    g(f"s_branch {lloop}")
    g.label(lsecond)
    for d, r in zip(R1, (rD, rS, rN, rC)):
        g(f"s_mov_b32 {s(d)}, {s(r)}")

    g.wait_all()
    stamp(1)
    for b in range(5):
        for h in range(2):
            g(f"v_lshlrev_b32 {v(XR + 4 * b + 2 * h)}, 16, {v(XL + 2 * b + h)}")
            g(f"v_and_b32 {v(XR + 4 * b + 2 * h + 1)}, 0xffff0000, {v(XL + 2 * b + h)}")
    ta, ones, FR, CS, c0 = T[0], 60, 64, 96, 128
    g(f"v_lshrrev_b32 {v(T[1])}, 2, {v(vLANE)}")
    g(f"v_lshlrev_b32 {v(ta)}, 8, {v(T[1])}")
    g(f"v_and_b32 {v(T[1])}, 3, {v(vLANE)}")
    g(f"v_lshl_add_u32 {v(ta)}, {v(T[1])}, 3, {v(ta)}")
    g(f"s_lshl_b32 s3, {s(sWV)}, 14")
    g(f"v_add_u32 {v(ta)}, s3, {v(ta)}")
    for i in range(4):
        g(f"v_mov_b32 {v(ones + i)}, 0x3f803f80")
    g(f"v_lshlrev_b32 {v(T[2])}, 2, {v(vLANE)}")
    g(f"s_mov_b32 {s(jSlot)}, 0")
    lo, lend, lnocs = g.newlabel("oloop"), g.newlabel("oend"), g.newlabel("nocs")
    lskip = g.newlabel("oskip")
    g.fence()
    g.label(lo)
    g(f"s_cmp_eq_u32 {s(R0[2])}, 0")
    g(f"s_cbranch_scc1 {lskip}")
    for nb in range(8):
        for h in range(2):
            g(f"ds_read_b64_tr_b16 {v(FR + 4 * nb + 2 * h, 2)}, {v(ta)} offset:{h * 4096 + nb * 32}")
    g("s_waitcnt lgkmcnt(0)")
    for nb in range(8):
        g(f"v_mfma_f32_16x16x32_bf16 {v(CS + 4 * nb, 4)}, {v(ones, 4)}, {v(FR + 4 * nb, 4)}, 0")
    lst = g.newlabel("stdone")
    for nb in range(8):
        if nb in (5, 7):
            g(f"s_cmp_eq_u32 {s(R0[2])}, {nb}")
            g(f"s_cbranch_scc1 {lst}")
        g(f"buffer_store_dwordx4 {v(FR + 4 * nb, 4)}, {v(vL16)}, {s(SWS, 4)}, {s(R0[0])} offen sc1")
        g(f"s_add_u32 {s(R0[0])}, {s(R0[0])}, {s(R0[1])}")
    g.label(lst)
    g(f"s_cmp_eq_u32 {s(R0[3])}, -1")
    g(f"s_cbranch_scc1 {lskip}")
    g.nop(8)
    for half in range(2):
        g(f"v_mov_b32 {v(c0 + half)}, {v(CS + 16 * half)}")
        for q in range(1, 4):
            g(f"s_lshl_b64 vcc, {s(sMG0, 2)}, {16 * q}")
            g(f"v_cndmask_b32 {v(c0 + half)}, {v(c0 + half)}, {v(CS + 16 * half + 4 * q)}, vcc")
        g(f"buffer_store_dword {v(c0 + half)}, {v(T[2])}, {s(SWS, 4)}, {s(R0[3])} offen offset:{256 * half} sc1")
    g.label(lskip)
    g(f"s_cmp_eq_u32 {s(jSlot)}, 1")
    g(f"s_cbranch_scc1 {lend}")
    g(f"s_mov_b32 {s(jSlot)}, 1")
    for d, r in zip(R0, R1):
        g(f"s_mov_b32 {s(d)}, {s(r)}")
    g(f"v_add_u32 {v(ta)}, 8192, {v(ta)}")
    g.nop(8)
    g(f"s_branch {lo}")
    g.label(lend)
    g.nop(8)
    g("s_branch L_epi4_x")


def stats_loads(regs):
    g(f"s_sub_u32 {s(sT0)}, {s(sXI)}, 1")
    g(f"s_mul_i32 {s(sT0)}, {s(sT0)}, {STSZ}")
    g(f"s_lshl_b32 {s(sT1)}, {s(sRA)}, 10")
    g(f"s_add_u32 {s(sT0)}, {s(sT0)}, {s(sT1)}")
    g(f"s_add_u32 {s(sT0)}, {s(sT0)}, {ST}")
    t = regs[8]
    g(f"v_and_b32 {v(t)}, 15, {v(vLANE)}")
    g(f"v_lshlrev_b32 {v(t)}, 3, {v(t)}")
    g(f"v_and_b32 {v(regs[9])}, 48, {v(vLANE)}")
    g(f"v_lshl_add_u32 {v(t)}, {v(regs[9])}, 4, {v(t)}")
    for k in range(2):
        for j in range(2):
            g.vm(f"buffer_load_dwordx2 {v(regs[4 * k + 2 * j], 2)}, {v(t)}, {s(SWS, 4)}, {s(sT0)} offen "
                 f"offset:{k * 1024 + j * 128} sc1", tag="st")


def stats_ops(regs):
    r = regs
    ops = []

    def o1():
        g.wait(vm="st")
        for k in range(2):
            g(f"v_pk_add_f32 {v(r[4 * k], 2)}, {v(r[4 * k], 2)}, {v(r[4 * k + 2], 2)}")
    ops.append(o1)
    vals, tm = [r[0], r[1], r[4], r[5]], [r[2], r[3], r[6], r[7]]
    for sw in ("v_permlane16_swap_b32", "v_permlane32_swap_b32"):
        ops.append(lambda: [g(f"v_mov_b32 {v(t)}, {v(x)}") for x, t in zip(vals[:2], tm[:2])])
        ops.append(lambda: [g(f"v_mov_b32 {v(t)}, {v(x)}") for x, t in zip(vals[2:], tm[2:])])
        ops.append(lambda sw=sw: [g(f"{sw} {v(x)}, {v(t)}") for x, t in zip(vals[:2], tm[:2])])
        ops.append(lambda sw=sw: [g(f"{sw} {v(x)}, {v(t)}") for x, t in zip(vals[2:], tm[2:])])
        ops.append(lambda: [g(f"v_add_f32 {v(x)}, {v(x)}, {v(t)}") for x, t in zip(vals[:2], tm[:2])])
        ops.append(lambda: [g(f"v_add_f32 {v(x)}, {v(x)}, {v(t)}") for x, t in zip(vals[2:], tm[2:])])
    for k in range(2):
        sm, sq, t = r[4 * k], r[4 * k + 1], r[4 * k + 2]

        def oa(sm=sm, sq=sq, t=t):
            g(f"v_mul_f32 {v(sm)}, 0xbacccccd, {v(sm)}")
            g(f"v_mul_f32 {v(sq)}, 0x3acccccd, {v(sq)}")

        def ob(sm=sm, sq=sq, t=t):
            g(f"v_fma_f32 {v(sq)}, -{v(sm)}, {v(sm)}, {v(sq)}")
            g(f"v_max_f32 {v(sq)}, 0, {v(sq)}")

        def oc(sm=sm, sq=sq, t=t):
            g(f"v_add_f32 {v(sq)}, 0x3727c5ac, {v(sq)}")
            g(f"v_rsq_f32 {v(sq)}, {v(sq)}")
        ops += [oa, ob, oc]

    def ow0():
        g(f"v_and_b32 {v(r[8])}, 15, {v(vLANE)}")
        g(f"s_lshl_b32 {s(sT0)}, {s(sWV)}, 8")
        g(f"s_add_u32 {s(sT0)}, {s(sT0)}, {TBL}")
        g(f"v_lshl_add_u32 {v(r[8])}, {v(r[8])}, 2, {s(sT0)}")
    ops.append(ow0)
    for k in range(2):
        ops.append(lambda k=k: (g.lg(f"ds_write_b32 {v(r[8])}, {v(r[4 * k])} offset:{64 * k}", tag="tw"),
                                g.lg(f"ds_write_b32 {v(r[8])}, {v(r[4 * k + 1])} offset:{128 + 64 * k}", tag="tw")))
    return ops


def cs_loads(regs, addr, base_const, per_tile):
    g(f"s_mul_i32 {s(sT2)}, {s(sC)}, {per_tile}")
    g(f"s_add_u32 {s(sT2)}, {s(sT2)}, {base_const}")
    g(f"v_lshrrev_b32 {v(addr)}, 2, {v(vT16)}")
    if per_tile == 2 * 20 * 512:
        g(f"v_lshrrev_b32 {v(regs[0])}, 9, {v(addr)}")
        g(f"v_mul_u32_u24 {v(regs[0])}, {20 * 512 - 512}, {v(regs[0])}")
        g(f"v_add_u32 {v(addr)}, {v(addr)}, {v(regs[0])}")
    else:
        g(f"v_and_b32 {v(addr)}, 511, {v(addr)}")
    ops = []
    for t in range(20):
        def ld(t=t):
            if t and t % 8 == 0:
                g(f"s_add_u32 {s(sT2)}, {s(sT2)}, 4096")
            g.vm(f"buffer_load_dword {v(regs[t])}, {v(addr)}, {s(SWS, 4)}, {s(sT2)} offen offset:{(t % 8) * 512} sc1",
                 tag="cs")
        ops.append(ld)
    return ops


def cs_sum_ops(regs, addr):
    ops = []

    def first():
        g.wait(vm="cs")
        g(f"v_add_f32 {v(regs[0])}, {v(regs[0])}, {v(regs[1])}")
    ops.append(first)
    for t in range(2, 20, 2):
        ops.append(lambda t=t: (g(f"v_add_f32 {v(regs[0])}, {v(regs[0])}, {v(regs[t])}"),
                                g(f"v_add_f32 {v(regs[0])}, {v(regs[0])}, {v(regs[t + 1])}")))

    def wr():
        g(f"v_lshrrev_b32 {v(addr)}, 2, {v(vT16)}")
        g(f"v_add_u32 {v(addr)}, {CST}, {v(addr)}")
        g.lg(f"ds_write_b32 {v(addr)}, {v(regs[0])}", tag="tw")
    ops.append(wr)
    return ops


def ring_gemm(NB, ACC, WB, NWB, XW, NXW, transposed, issued, bar_every, pre_ops, side, xoff):
    Q = 20 * NB
    NG = Q // 8
    D = NWB - 1

    def xload(t):
        for k in range(2):
            if k == 0:
                so, off = xoff, t * 1024
            else:
                so, off = xoff + 1, t * 1024
            g(f"s_add_u32 s3, {s(so)}, {off}")
            g.vm(f"buffer_load_dwordx4 {v(XW + (t % NXW) * 8 + 4 * k, 4)}, {v(vL16)}, {s(SWS, 4)}, s3 offen sc1",
                 tag=("X", t))

    def wread(q):
        base, off = lds_base((q * 1024) % RING)
        g.lg(f"ds_read_b128 {v(WB + (q % NWB) * 4, 4)}, {v(base)} offset:{off}", tag=("W", q))

    xload(0)
    xload(1)
    for op in pre_ops:
        op()
    for t in range(2, NXW):
        xload(t)
    bars = list(range(0, Q, bar_every))
    fifo = []
    side = sorted(side, key=lambda z: z[0])
    state = dict(issued=issued)

    def barrier_at(f0):
        nxt = min([b for b in bars if b > f0] + [Q])
        need = min(Q - 1, nxt - 1 + D) // 8
        assert need < state["issued"], (f0, need, state["issued"])
        g.wait(vm=[("G", i) for i in range(need + 1)])
        g("s_barrier")
        free = f0 // 8
        while state["issued"] < NG and state["issued"] - NRG < free:
            fifo.append(lambda G=state["issued"]: dma_group(G))
            state["issued"] += 1

    barrier_at(0)
    for q in range(D):
        wread(q)
    for q in range(Q):
        t, nb = divmod(q, NB)
        if q in bars and q > 0:
            while fifo:
                fifo.pop(0)()
            barrier_at(q)
        if nb == 0:
            g.wait(vm=[("X", t)], lg=[("W", q)])
            if t >= 1 and t - 1 + NXW < 20:
                fifo.insert(0, lambda tt=t - 1 + NXW: xload(tt))
        else:
            g.wait(lg=[("W", q)])
        w = v(WB + (q % NWB) * 4, 4)
        for k in range(2):
            acc = v(ACC + (nb * 2 + k) * 4, 4)
            x = v(XW + (t % NXW) * 8 + 4 * k, 4)
            c = "0" if t == 0 else acc
            if transposed(nb):
                g(f"v_mfma_f32_16x16x32_bf16 {acc}, {w}, {x}, {c}")
            else:
                g(f"v_mfma_f32_16x16x32_bf16 {acc}, {x}, {w}, {c}")
            if k == 0 and q + D < Q:
                wread(q + D)
        if fifo:
            fifo.pop(0)()
        elif side and side[0][0] <= q:
            side.pop(0)[1]()
    while fifo:
        fifo.pop(0)()
    while side:
        side.pop(0)[1]()


def wpf_ops(n, base_const, per_ct, wave_starts, regname):
    g(f"s_mul_i32 {s(sPFOFF)}, {s(sCT)}, {per_ct}")
    g(f"s_add_u32 {s(sPFOFF)}, {s(sPFOFF)}, {base_const}")
    if wave_starts == "k2":
        g(f"s_mul_i32 s3, {s(sWV)}, {25 * KB}")
    else:
        g(f"s_mul_i32 s3, {s(sWV)}, 14")
        g(f"s_cmp_eq_u32 {s(sWV)}, 3")
        g(f"s_cselect_b32 s3, 41, s3")
        g(f"s_mul_i32 s3, s3, {5 * KB}")
    g(f"s_add_u32 {s(sPFOFF)}, {s(sPFOFF)}, s3")
    ops = []
    for i in range(n):
        def ld(i=i):
            if i and i % 4 == 0:
                g(f"s_add_u32 {s(sPFOFF)}, {s(sPFOFF)}, 4096")
            g.vm(f"buffer_load_dwordx4 {regname(i)}, {v(vL16)}, {s(SWS, 4)}, {s(sPFOFF)} offen offset:{(i % 4) * 1024} sc1",
                 tag=("WP", i))
        ops.append(ld)
    return ops


def reg_gemm(NT, XW, NXW, ACC, wreg, xbase, ntot, side, skip_last):
    for p in range(4):
        g(f"s_add_u32 s3, {s(sWV)}, {p + 1}")
        g(f"s_and_b32 s3, s3, 3")
        g(f"s_mul_i32 s3, s3, {ntot * KB}")
        g(f"s_add_u32 {s(sXOFF + p)}, {s(xbase)}, s3")
    N = 4 * NT

    def xload(i):
        p, t = divmod(i, NT)
        if skip_last and t == NT - 1:
            g(f"s_add_u32 s3, {s(sXOFF + p)}, {s(sX14)}")
        else:
            g(f"s_add_u32 s3, {s(sXOFF + p)}, {t * KB}")
        g.vm(f"buffer_load_dwordx4 {v(XW + (i % NXW) * 4, 4)}, {v(vL16)}, {s(SWS, 4)}, s3 offen sc1", tag=("X", i))

    for i in range(min(NXW, N)):
        xload(i)
    ra = [T[0], T[1], T[2]]
    for p in range(3):
        g(f"s_add_u32 s3, {s(sWV)}, {p + 1}")
        g(f"s_and_b32 s3, s3, 3")
        g(f"s_mul_i32 s3, s3, {15 * KB}")
        g(f"s_add_u32 s3, s3, {RED + p * 5 * KB}")
        g(f"v_add_u32 {v(ra[p])}, s3, {v(vL16)}")
    g(f"s_mul_i32 s3, {s(sWV)}, {15 * KB}")
    g(f"s_add_u32 s3, s3, {RED}")
    g(f"v_add_u32 {v(T[3])}, s3, {v(vL16)}")
    fifo = []
    side = list(side)
    for i in range(N):
        p, t = divmod(i, NT)
        acc0 = ACC + (p & 1) * 20
        tags = [("X", i)] + [("WP", t * 5 + nb) for nb in range(5)]
        g.wait(vm=tags)
        sv = None
        if skip_last and t == NT - 1:
            lab = g.newlabel("skipk")
            g(f"s_cmp_ge_u32 {s(sWV)}, 2")
            g(f"s_cbranch_scc1 {lab}")
            sv = begin_skip()
        for nb in range(5):
            acc = v(acc0 + 4 * nb, 4)
            g(f"v_mfma_f32_16x16x32_bf16 {acc}, {wreg(t * 5 + nb)}, {v(XW + (i % NXW) * 4, 4)}, {'0' if t == 0 else acc}")
            if sv is None and nb in (1, 3) and fifo:
                fifo.pop(0)()
        if sv is not None:
            end_skip(sv)
            g.label(lab)
        if i + NXW < N:
            xload(i + NXW)
        elif side:
            side.pop(0)()
        if t == NT - 1 and p < 3:
            def mk(nb, p=p, acc0=acc0):
                return lambda: g.lg(f"ds_write_b128 {v(ra[p])}, {v(acc0 + 4 * nb, 4)} offset:{nb * 1024}", tag="rw")
            fifo += [lambda: None, lambda: None] + [mk(nb) for nb in range(5)]
    while fifo:
        fifo.pop(0)()
    while side:
        side.pop(0)()
    g.wait_all(vm=False)
    g("s_barrier")
    RR = 40
    for j in range(15):
        g.lg(f"ds_read_b128 {v(RR + 4 * j, 4)}, {v(T[3])} offset:{j * 1024}", tag=("R", j))
    accF = ACC + 20
    for p in range(3):
        g.wait(lg=[("R", p * 5 + 4)])
        for i in range(0, 20, 2):
            g(f"v_pk_add_f32 {v(accF + i, 2)}, {v(accF + i, 2)}, {v(RR + 20 * p + i, 2)}")
    for i in range(0, 20, 2):
        g(f"v_pk_add_f32 {v(XR + i, 2)}, {v(XR + i, 2)}, {v(accF + i, 2)}")


PK = 100


def epi_pack():
    for b in range(5):
        for h in range(2):
            g(f"v_cvt_pk_bf16_f32 {v(PK + 2 * b + h)}, {v(XR + 4 * b + 2 * h)}, {v(XR + 4 * b + 2 * h + 1)}")
    g(f"v_mov_b32 {v(PK + 10)}, {v(PK + 8)}")
    g(f"v_mov_b32 {v(PK + 11)}, {v(PK + 9)}")


def epi_x():
    epi_pack()
    g(f"s_mul_i32 {s(sT0)}, {s(sXI)}, {XSZ}")
    g(f"s_mul_i32 {s(sT1)}, {s(sR16)}, {20 * KB}")
    g(f"s_add_u32 {s(sT0)}, {s(sT0)}, {s(sT1)}")
    g(f"s_add_u32 {s(sT0)}, {s(sT0)}, {XF}")
    g(f"s_lshl_b32 {s(sT1)}, {s(sCT)}, 11")
    g(f"s_add_u32 {s(sT1)}, {s(sT1)}, {s(sT0)}")
    g.vm(f"buffer_store_dwordx4 {v(PK, 4)}, {v(vL16)}, {s(SWS, 4)}, {s(sT1)} offen sc1")
    g.vm(f"buffer_store_dwordx4 {v(PK + 4, 4)}, {v(vL16)}, {s(SWS, 4)}, {s(sT1)} offen offset:1024 sc1")
    for b in range(5):
        for h in range(2):
            g(f"v_lshlrev_b32 {v(XR + 4 * b + 2 * h)}, 16, {v(PK + 2 * b + h)}")
            g(f"v_and_b32 {v(XR + 4 * b + 2 * h + 1)}, 0xffff0000, {v(PK + 2 * b + h)}")
    g(f"v_permlane16_swap_b32 {v(PK + 8)}, {v(PK + 10)}")
    g(f"v_permlane16_swap_b32 {v(PK + 9)}, {v(PK + 11)}")
    g(f"s_lshr_b32 {s(sT1)}, {s(sCT)}, 1")
    g(f"s_lshl_b32 {s(sT1)}, {s(sT1)}, 10")
    g(f"s_and_b32 s3, {s(sCT)}, 1")
    g(f"s_lshl_b32 s3, s3, 9")
    g(f"s_add_u32 {s(sT1)}, {s(sT1)}, s3")
    g(f"s_add_u32 {s(sT1)}, {s(sT1)}, {s(sT0)}")
    g(f"s_add_u32 {s(sT1)}, {s(sT1)}, {16 * KB}")
    g(f"v_and_b32 {v(T[0])}, 15, {v(vLANE)}")
    g(f"v_lshrrev_b32 {v(T[1])}, 5, {v(vLANE)}")
    g(f"v_lshl_add_u32 {v(T[1])}, {v(T[1])}, 4, {v(T[0])}")
    g(f"v_lshlrev_b32 {v(T[1])}, 4, {v(T[1])}")
    g("s_mov_b32 exec_lo, 0xffff")
    g("s_mov_b32 exec_hi, 0xffff")
    g.vm(f"buffer_store_dwordx4 {v(PK + 8, 4)}, {v(T[1])}, {s(SWS, 4)}, {s(sT1)} offen sc1")
    g("s_mov_b64 exec, -1")
    sm, sq = T[2], T[4]
    g(f"v_pk_add_f32 {v(sm, 2)}, {v(XR, 2)}, {v(XR + 2, 2)}")
    g(f"v_pk_mul_f32 {v(sq, 2)}, {v(XR, 2)}, {v(XR, 2)}")
    g(f"v_pk_fma_f32 {v(sq, 2)}, {v(XR + 2, 2)}, {v(XR + 2, 2)}, {v(sq, 2)}")
    for i in range(4, 20, 2):
        g(f"v_pk_add_f32 {v(sm, 2)}, {v(sm, 2)}, {v(XR + i, 2)}")
        g(f"v_pk_fma_f32 {v(sq, 2)}, {v(XR + i, 2)}, {v(XR + i, 2)}, {v(sq, 2)}")
    g(f"v_add_f32 {v(T[2])}, {v(T[2])}, {v(T[3])}")
    g(f"v_add_f32 {v(T[3])}, {v(T[4])}, {v(T[5])}")
    reduce_g([T[2], T[3]], [T[4], T[5]])
    g(f"s_mul_i32 {s(sT0)}, {s(sXI)}, {STSZ}")
    g(f"s_lshl_b32 {s(sT1)}, {s(sR16)}, 10")
    g(f"s_add_u32 {s(sT0)}, {s(sT0)}, {s(sT1)}")
    g(f"s_lshl_b32 {s(sT1)}, {s(sCT)}, 7")
    g(f"s_add_u32 {s(sT0)}, {s(sT0)}, {s(sT1)}")
    g(f"s_add_u32 {s(sT0)}, {s(sT0)}, {ST}")
    g(f"v_lshlrev_b32 {v(T[0])}, 3, {v(T[0])}")
    g(f"s_mov_b64 exec, {s(sMG0, 2)}")
    g.vm(f"buffer_store_dwordx2 {v(T[2], 2)}, {v(T[0])}, {s(SWS, 4)}, {s(sT0)} offen sc1")
    g("s_mov_b64 exec, -1")
    g(f"s_add_u32 {s(sXI)}, {s(sXI)}, 1")


def set_xoff_ring():
    g(f"s_sub_u32 {s(sXOFF)}, {s(sXI)}, 1")
    g(f"s_mul_i32 {s(sXOFF)}, {s(sXOFF)}, {XSZ}")
    g(f"s_mul_i32 s3, {s(sRA)}, {20 * KB}")
    g(f"s_add_u32 {s(sXOFF)}, {s(sXOFF)}, s3")
    g(f"s_add_u32 {s(sXOFF)}, {s(sXOFF)}, {XF}")
    g(f"s_add_u32 {s(sXOFF + 1)}, {s(sXOFF)}, {20 * KB}")


def set_goff(base, per_tile, group):
    g(f"s_mul_i32 {s(sGOFF)}, {s(sC)}, {per_tile}")
    g(f"s_add_u32 {s(sGOFF)}, {s(sGOFF)}, {base + group * 8 * KB}")


def tbl_addrs(tN, tT):
    g(f"s_lshl_b32 s3, {s(sWV)}, 8")
    g(f"s_add_u32 s3, s3, {TBL}")
    if tN is not None:
        g(f"v_and_b32 {v(tN)}, 48, {v(vLANE)}")
        g(f"v_add_u32 {v(tN)}, s3, {v(tN)}")
    g(f"v_and_b32 {v(tT)}, 15, {v(vLANE)}")
    g(f"v_lshl_add_u32 {v(tT)}, {v(tT)}, 2, s3")


BC1 = "op_sel_hi:[1,0,1]"


def k1():
    ACC, WB, NWB, XW, NXW = 40, 104, 6, 128, 14
    X2 = list(range(240, 256))
    g.label("L_k1")
    stamp(2)
    set_xoff_ring()
    st_regs = X2[:10]
    cs_regs = T[:8] + X2[:12]
    side = []
    f = 12
    for op in stats_ops(st_regs):
        side.append((f, op))
        f += 1
    holder = []
    side.append((f, lambda: holder.extend(cs_loads(cs_regs, X2[12], CS1, 20 * 512))))
    for i in range(20):
        side.append((f + 1 + i, lambda: holder.pop(0)()))
    f += 40
    for op in cs_sum_ops(cs_regs, X2[12]):
        side.append((f, op))
        f += 1
    holder2 = []
    side.append((f, lambda: holder2.extend(wpf_ops(25, WF2, 100 * KB, "k2", lambda i: a(4 * i, 4)))))
    for i in range(25):
        side.append((f + 1 + 2 * i, lambda: holder2.pop(0)()))
    ring_gemm(8, ACC, WB, NWB, XW, NXW, lambda nb: nb >= 5, NRG, 16, [lambda: stats_loads(st_regs)], side, sXOFF)
    stamp(3)
    g.wait_all(vm=False)
    g("s_barrier")
    set_goff(WF3, 280 * KB, 0)
    for G in range(EARLY):
        dma_group(G)
    NM4, RS4, RL4 = 128, 136, 144
    NMT, RST, RLT = 152, 156, 160
    CN, CTT = 164, 176
    PKF, VF, PQ = 188, 200, 212
    TM = 228
    tbl_addrs(T[0], T[1])
    for k in range(2):
        g.lg(f"ds_read_b128 {v(NM4 + 4 * k, 4)}, {v(T[0])} offset:{64 * k}", tag="e")
        g.lg(f"ds_read_b128 {v(RS4 + 4 * k, 4)}, {v(T[0])} offset:{128 + 64 * k}", tag="e")
        g.lg(f"ds_read_b32 {v(NMT + 2 * k)}, {v(T[1])} offset:{64 * k}", tag="e")
        g.lg(f"ds_read_b32 {v(RST + 2 * k)}, {v(T[1])} offset:{128 + 64 * k}", tag="e")
    g(f"v_and_b32 {v(T[2])}, 15, {v(vLANE)}")
    g(f"v_lshlrev_b32 {v(T[2])}, 2, {v(T[2])}")
    g(f"v_add_u32 {v(T[2])}, {CST}, {v(T[2])}")
    g(f"v_and_b32 {v(T[3])}, 48, {v(vLANE)}")
    g(f"v_add_u32 {v(T[3])}, {CST}, {v(T[3])}")
    for b in range(5):
        g.lg(f"ds_read_b32 {v(CN + 2 * b)}, {v(T[2])} offset:{64 * b}", tag="e")
    for b in range(5, 8):
        g.lg(f"ds_read_b128 {v(CTT + 4 * (b - 5), 4)}, {v(T[3])} offset:{64 * b}", tag="e")
    for i in range(4):
        g(f"v_mov_b32 {v(TM + i)}, 0")
    g(f"v_lshlrev_b32 {v(T[4])}, 1, {v(vT16)}")
    g(f"v_add_u32 {v(T[4])}, {KVF}, {v(T[4])}")
    g.lg(f"ds_write_b128 {v(T[4])}, {v(TM, 4)}", tag="z")
    g.lg(f"ds_write_b128 {v(T[4])}, {v(TM, 4)} offset:16", tag="z")
    g.wait(lg=["e"])
    LOG2E = "0x3fb8aa3b"
    for i in range(8):
        g(f"v_mul_f32 {v(RL4 + i)}, {LOG2E}, {v(RS4 + i)}")
    for k in range(2):
        g(f"v_mul_f32 {v(RLT + 2 * k)}, {LOG2E}, {v(RST + 2 * k)}")

    def phi(u, rs, rl, bc, dst, tm):
        m = f" {BC1}" if bc else ""
        m2 = " op_sel_hi:[1,0]" if bc else ""
        g(f"v_pk_mul_f32 {v(tm, 2)}, {v(u, 2)}, {v(rl, 2)}{m2}")
        g(f"v_pk_fma_f32 {v(tm + 2, 2)}, {v(u, 2)}, {v(rs, 2)}, {s(sEPS6, 2)}{m}")
        g(f"v_exp_f32_e64 {v(tm)}, {v(tm)} clamp")
        g(f"v_exp_f32_e64 {v(tm + 1)}, {v(tm + 1)} clamp")
        g(f"v_max_f32 {v(tm + 2)}, {s(sEPS6)}, {v(tm + 2)}")
        g(f"v_max_f32 {v(tm + 3)}, {s(sEPS6)}, {v(tm + 3)}")
        g(f"v_pk_add_f32 {v(tm, 2)}, {v(tm, 2)}, {v(tm + 2, 2)}")
        g(f"v_cvt_pk_bf16_f32 {v(dst)}, {v(tm)}, {v(tm + 1)}")

    n = 0
    for b in range(5):
        for k in range(2):
            for h in range(2):
                u = ACC + (b * 2 + k) * 4 + 2 * h
                g(f"v_pk_fma_f32 {v(u, 2)}, {v(NM4 + 4 * k + 2 * h, 2)}, {v(CN + 2 * b, 2)}, {v(u, 2)} {BC1}")
                if b <= 2:
                    phi(u, RS4 + 4 * k + 2 * h, RL4 + 4 * k + 2 * h, False, PKF + 4 * b + 2 * k + h, TM + 4 * (n % 4))
                    n += 1
                if b >= 2:
                    g(f"v_pk_mul_f32 {v(u, 2)}, {v(u, 2)}, {v(RS4 + 4 * k + 2 * h, 2)}")
                    g(f"v_cvt_pk_bf16_f32 {v(VF + 4 * (b - 2) + 2 * k + h)}, {v(u)}, {v(u + 1)}")
    g(f"v_mov_b32 {v(T[5])}, 0x3f803f80")
    for i in range(4):
        g(f"v_cndmask_b32 {v(VF + i)}, {v(VF + i)}, {v(T[5])}, {s(sM8, 2)}")
    KC = 40
    pairs = [(0, 0), (0, 1), (1, 0), (1, 1), (1, 2), (2, 0), (2, 1), (2, 2)]
    for bd, be in pairs:
        g(f"v_mfma_f32_16x16x32_bf16 {v(KC + 4 * (3 * bd + be), 4)}, {v(PKF + 4 * bd, 4)}, {v(VF + 4 * be, 4)}, 0")
    for b in range(5, 8):
        for k in range(2):
            for h in range(2):
                u = ACC + (b * 2 + k) * 4 + 2 * h
                g(f"v_pk_fma_f32 {v(u, 2)}, {v(CTT + 4 * (b - 5) + 2 * h, 2)}, {v(NMT + 2 * k, 2)}, {v(u, 2)} {BC1}")
                dst = PQ + 8 * k + (2 * (b - 5) + h)
                phi(u, RST + 2 * k, RLT + 2 * k, True, dst, TM + 4 * (n % 4))
                n += 1
        if b == 5:
            g(f"s_mul_i32 s3, {s(sWV)}, {9 * KB}")
            g(f"s_add_u32 s3, s3, {KVS}")
            g(f"v_add_u32 {v(T[6])}, s3, {v(vL16)}")
            for bd, be in pairs:
                i = 3 * bd + be
                g.lg(f"ds_write_b128 {v(T[6])}, {v(KC + 4 * i, 4)} offset:{i * 1024}", tag="kw")
            g.wait_all(vm=False)
            g("s_barrier")
            for w in range(4):
                g.lg(f"ds_read_b128 {v(40 + 4 * w, 4)}, {v(vKVS)} offset:{w * 9 * KB}", tag="kr")
        if b == 6:
            g.wait(lg=["kr"])
            for w in range(1, 4):
                for h in range(2):
                    g(f"v_pk_add_f32 {v(40 + 2 * h, 2)}, {v(40 + 2 * h, 2)}, {v(40 + 4 * w + 2 * h, 2)}")
            g(f"s_mul_i32 {s(sT0)}, {s(sLAYER)}, {KVSZ}")
            g(f"s_lshl_b32 s3, {s(sC)}, 16")
            g(f"s_add_u32 {s(sT0)}, {s(sT0)}, s3")
            g(f"s_add_u32 {s(sT0)}, {s(sT0)}, {KVP}")
            g(f"s_lshl_b32 s3, {s(sRB)}, 12")
            g(f"s_add_u32 s3, s3, {s(sT0)}")
            g.vm(f"buffer_store_dwordx4 {v(40, 4)}, {v(vT16)}, {s(SWS, 4)}, s3 offen sc1")
    for k in range(2):
        g(f"v_mov_b32 {v(PQ + 8 * k + 6)}, 0")
        g(f"v_mov_b32 {v(PQ + 8 * k + 7)}, 0")
    stamp(4)
    handoff(2, 2, sCTG)
    g(f"s_add_u32 {s(sCTG)}, {s(sCTG)}, 16")
    stamp(5)
    for r in range(16):
        g.vm(f"buffer_load_dwordx4 {v(40 + 4 * r, 4)}, {v(vT16)}, {s(SWS, 4)}, {s(sT0)} offen sc1", tag=("P", r))
        if r < 15:
            g(f"s_add_u32 {s(sT0)}, {s(sT0)}, 4096")
    for r in range(1, 16):
        if r % 4 == 1 or r == 15:
            g.wait(vm=[("P", min(15, r + 3))])
        for h in range(2):
            g(f"v_pk_add_f32 {v(40 + 2 * h, 2)}, {v(40 + 2 * h, 2)}, {v(40 + 4 * r + 2 * h, 2)}")
    g(f"v_cvt_pk_bf16_f32 {v(44)}, {v(40)}, {v(41)}")
    g(f"v_cvt_pk_bf16_f32 {v(45)}, {v(42)}, {v(43)}")
    g.lg(f"ds_write_b64 {v(vKVD)}, {v(44, 2)}", tag="fw")
    lz = g.newlabel("noz")
    g(f"s_cmp_lg_u32 {s(sWV)}, 3")
    g(f"s_cbranch_scc1 {lz}")
    sv = begin_skip()
    g("s_mov_b64 exec, 0x3ff00")
    for i in range(1, 8):
        g(f"ds_write_b64 {v(vKVD)}, {v(44, 2)} offset:{32 * i}")
    g("s_mov_b64 exec, -1")
    end_skip(sv)
    g.label(lz)
    g.wait_all(vm=False)
    g("s_barrier")
    F = 48
    fl = [(0, 0), (1, 0), (1, 1), (2, 0), (2, 1), (3, 0), (3, 1)]
    base, off = lds_base(KVF)
    for i, (b, tt) in enumerate(fl):
        g.lg(f"ds_read_b128 {v(F + 4 * i, 4)}, {v(base)} offset:{off + (2 * b + tt) * 1024}", tag=("F", i))
    NU = 128
    order = [5, 6, 0, 1, 2, 3, 4]
    g.wait(lg=[("F", 6)])
    for i in order:
        b, tt = fl[i]
        for k in range(2):
            d = v(NU + 16 * k + 4 * b, 4)
            g(f"v_mfma_f32_16x16x32_bf16 {d}, {v(F + 4 * i, 4)}, {v(PQ + 8 * k + 4 * tt, 4)}, {'0' if tt == 0 else d}")
    g(f"s_mul_i32 {s(sT0)}, {s(sLAYER)}, {XSZ}")
    g(f"s_mul_i32 s3, {s(sRA)}, {20 * KB}")
    g(f"s_add_u32 {s(sT0)}, {s(sT0)}, s3")
    g(f"s_add_u32 {s(sT0)}, {s(sT0)}, {OF}")
    g(f"s_lshl_b32 s3, {s(sC)}, 10")
    g(f"s_add_u32 {s(sT1)}, {s(sT0)}, s3")
    g(f"s_add_u32 {s(sT2)}, {s(sT1)}, {20 * KB}")
    g(f"s_lshr_b32 s3, {s(sC)}, 2")
    g(f"s_lshl_b32 s3, s3, 10")
    g(f"s_add_u32 {s(sT0)}, {s(sT0)}, s3")
    g(f"s_and_b32 s3, {s(sC)}, 3")
    g(f"s_lshl_b32 s3, s3, 8")
    g(f"s_add_u32 {s(sT0)}, {s(sT0)}, s3")
    g(f"s_add_u32 {s(sT0)}, {s(sT0)}, {16 * KB}")
    g(f"v_and_b32 {v(T[0])}, 15, {v(vLANE)}")
    g(f"v_lshlrev_b32 {v(T[0])}, 4, {v(T[0])}")
    g(f"v_bfe_u32 {v(T[1])}, {v(vLANE)}, 4, 1")
    g(f"v_mul_u32_u24 {v(T[1])}, {20 * KB}, {v(T[1])}")
    g(f"v_add_u32 {v(T[0])}, {v(T[0])}, {v(T[1])}")
    RC = 160
    OP = 176
    for k in range(2):
        dn = NU + 16 * k + 12
        g(f"v_add_f32 {v(dn)}, {s(sEPS6)}, {v(dn)}")
        g(f"v_add_f32 {v(dn + 1)}, {s(sEPS6)}, {v(dn + 1)}")
        g(f"v_rcp_f32 {v(RC + 8 * k)}, {v(dn)}")
        g(f"v_rcp_f32 {v(RC + 8 * k + 2)}, {v(dn + 1)}")
        g(f"v_cndmask_b32 {v(RC + 8 * k + 4)}, {v(RC + 8 * k + 2)}, {v(RC + 8 * k)}, {s(sMG0, 2)}")
    for k in range(2):
        for b in range(3):
            rc = RC + 8 * k + (0, 4, 2)[b]
            for h in range(2):
                u = NU + 16 * k + 4 * b + 2 * h
                g(f"v_pk_mul_f32 {v(u, 2)}, {v(u, 2)}, {v(rc, 2)} op_sel_hi:[1,0]")
                dst = OP + 4 * k + 2 * b + h if b < 2 else OP + 8 + 2 * k + h
                g(f"v_cvt_pk_bf16_f32 {v(dst)}, {v(u)}, {v(u + 1)}")
        g.vm(f"buffer_store_dwordx4 {v(OP + 4 * k, 4)}, {v(vL16)}, {s(SWS, 4)}, {s((sT1, sT2)[k])} offen sc1")
    g(f"v_permlane16_swap_b32 {v(OP + 8)}, {v(OP + 10)}")
    g(f"v_permlane16_swap_b32 {v(OP + 9)}, {v(OP + 11)}")
    g("s_mov_b64 exec, 0xffffffff")
    g.vm(f"buffer_store_dwordx4 {v(OP + 8, 4)}, {v(T[0])}, {s(SWS, 4)}, {s(sT0)} offen sc1")
    g("s_mov_b64 exec, -1")
    stamp(6)
    g(f"s_add_u32 {s(sRTG)}, {s(sRTG)}, 16")
    handoff(1, 1, sRTG)
    stamp(7)


def k2():
    g(f"s_mul_i32 {s(sT4)}, {s(sLAYER)}, {XSZ}")
    g(f"s_sub_u32 s3, {s(sR16)}, {s(sWV)}")
    g(f"s_mul_i32 s3, s3, {20 * KB}")
    g(f"s_add_u32 {s(sT4)}, {s(sT4)}, s3")
    g(f"s_mul_i32 s3, {s(sWV)}, {5 * KB}")
    g(f"s_add_u32 {s(sT4)}, {s(sT4)}, s3")
    g(f"s_add_u32 {s(sT4)}, {s(sT4)}, {OF}")
    reg_gemm(5, 40, 20, 120, lambda i: a(4 * i, 4), sT4, 20, [], False)
    stamp(8)
    epi_x()
    stamp(9)
    g(f"s_add_u32 {s(sRTG)}, {s(sRTG)}, 16")
    cs_regs = list(range(40, 60))

    def mid():
        for op in cs_loads(cs_regs, 60, CS3, 2 * 20 * 512):
            op()
        for G in range(EARLY, NRG):
            dma_group(G)
        for op in cs_sum_ops(cs_regs, 60):
            op()
    handoff(1, 1, sRTG, mid=mid)
    stamp(10)


W4X = 192


def w4reg(i):
    return a(4 * i, 4) if i < 64 else v(W4X + 4 * (i - 64), 4)


def k3():
    ACC, WB, NWB, XW, NXW = 40, 152, 6, 176, 10
    set_xoff_ring()
    side = []
    f = 20
    for op in stats_ops(T):
        side.append((f, op))
        f += 1
    holder = []
    side.append((f, lambda: holder.extend(wpf_ops(70, WF4, 270 * KB, "k4", w4reg))))
    for i in range(64):
        side.append((f + 1 + 3 * i, lambda: holder.pop(0)()))
    ring_gemm(14, ACC, WB, NWB, XW, NXW, lambda nb: True, NRG, 28, [lambda: stats_loads(T)], side, sXOFF)
    stamp(11)
    for op in holder:
        op()
    CSR = [152, 160, 168, 176, 184, 216, 224]
    NMT, R2 = 232, 236
    tbl_addrs(None, T[1])
    g(f"v_and_b32 {v(T[3])}, 48, {v(vLANE)}")
    g(f"v_add_u32 {v(T[3])}, {CST}, {v(T[3])}")
    for k in range(2):
        g.lg(f"ds_read_b32 {v(NMT + 2 * k)}, {v(T[1])} offset:{64 * k}", tag="e")
        g.lg(f"ds_read_b32 {v(R2 + 2 * k)}, {v(T[1])} offset:{128 + 64 * k}", tag="e")
    for p in range(7):
        g.lg(f"ds_read_b128 {v(CSR[p], 4)}, {v(T[3])} offset:{64 * p}", tag=("c", p))
        g.lg(f"ds_read_b128 {v(CSR[p] + 4, 4)}, {v(T[3])} offset:{512 + 64 * p}", tag=("c", p))
    g(f"s_mul_i32 {s(sT0)}, {s(sLAYER)}, {HSZ}")
    g(f"s_mul_i32 s3, {s(sRA)}, {54 * KB}")
    g(f"s_add_u32 {s(sT0)}, {s(sT0)}, s3")
    g(f"s_add_u32 {s(sT0)}, {s(sT0)}, {HF}")
    g(f"s_mul_i32 s3, {s(sC)}, {3 * KB}")
    g(f"s_add_u32 {s(sT1)}, {s(sT0)}, s3")
    g(f"s_add_u32 {s(sT2)}, {s(sT1)}, {54 * KB}")
    g(f"s_lshl_b32 s3, {s(sCT)}, 10")
    g(f"s_add_u32 {s(sT0)}, {s(sT0)}, s3")
    g(f"s_lshl_b32 s3, {s(sRH)}, 9")
    g(f"s_add_u32 {s(sT0)}, {s(sT0)}, s3")
    g(f"s_add_u32 {s(sT0)}, {s(sT0)}, {46 * KB}")
    g(f"v_and_b32 {v(T[4])}, 15, {v(vLANE)}")
    g(f"v_lshrrev_b32 {v(T[5])}, 5, {v(vLANE)}")
    g(f"v_lshl_add_u32 {v(T[4])}, {v(T[5])}, 4, {v(T[4])}")
    g(f"v_lshlrev_b32 {v(T[4])}, 4, {v(T[4])}")
    g(f"v_bfe_u32 {v(T[5])}, {v(vLANE)}, 4, 1")
    g(f"v_mul_u32_u24 {v(T[5])}, {54 * KB}, {v(T[5])}")
    g(f"v_add_u32 {v(T[4])}, {v(T[4])}, {v(T[5])}")
    g.wait(lg=["e"])
    for k in range(2):
        g(f"v_mul_f32 {v(R2 + 2 * k)}, {v(R2 + 2 * k)}, {v(R2 + 2 * k)}")
    lab = None
    for p in (0, 1, 6, 2, 3, 4, 5):
        if p == 2:
            lab = g.newlabel("c15")
            g.wait(lg=[("c", 6)])
            g(f"s_cmp_eq_u32 {s(sC)}, 15")
            g(f"s_cbranch_scc1 {lab}")
            sv = begin_skip()
        g.wait(lg=[("c", p)])
        for k in range(2):
            G_ = ACC + (4 * p + k) * 4
            U_ = ACC + (4 * p + 2 + k) * 4
            if p == 6:
                dst = ACC + (4 * 6) * 4 + 2 * k
            else:
                dst = ACC + (4 * (p & ~1) + k) * 4 + 2 * (p & 1)
            tm = T[6] if k == 0 else T[8]
            for h in range(2):
                g(f"v_pk_fma_f32 {v(G_ + 2 * h, 2)}, {v(CSR[p] + 2 * h, 2)}, {v(NMT + 2 * k, 2)}, {v(G_ + 2 * h, 2)} {BC1}")
                g(f"v_pk_fma_f32 {v(U_ + 2 * h, 2)}, {v(CSR[p] + 4 + 2 * h, 2)}, {v(NMT + 2 * k, 2)}, {v(U_ + 2 * h, 2)} {BC1}")
            for h in range(2):
                g(f"v_pk_mul_f32 {v(U_ + 2 * h, 2)}, {v(U_ + 2 * h, 2)}, {v(R2 + 2 * k, 2)} op_sel_hi:[1,0]")
            for h in range(2):
                g(f"v_pk_mul_f32 {v(U_ + 2 * h, 2)}, {v(U_ + 2 * h, 2)}, {v(G_ + 2 * h, 2)}")
            if p == 6 and k == 0:
                pass
            for h in range(2):
                g(f"v_cvt_pk_bf16_f32 {v(dst + h)}, {v(U_ + 2 * h)}, {v(U_ + 2 * h + 1)}")
            if p < 6 and p & 1:
                g.vm(f"buffer_store_dwordx4 {v(ACC + (4 * (p - 1) + k) * 4, 4)}, {v(vL16)}, {s(SWS, 4)}, "
                     f"{s((sT1, sT2)[k])} offen offset:{(p >> 1) * 1024} sc1", maybe=(p > 1))
        if p == 6:
            d = ACC + 24 * 4
            g(f"v_permlane16_swap_b32 {v(d)}, {v(d + 2)}")
            g(f"v_permlane16_swap_b32 {v(d + 1)}, {v(d + 3)}")
            g.vm(f"buffer_store_dwordx4 {v(d, 4)}, {v(T[4])}, {s(SWS, 4)}, {s(sT0)} offen sc1")
    end_skip(sv)
    g.label(lab)
    stamp(12)
    g(f"s_add_u32 {s(sRTG)}, {s(sRTG)}, 16")
    handoff(1, 1, sRTG)
    stamp(13)


def k4():
    g(f"s_mul_i32 {s(sT4)}, {s(sLAYER)}, {HSZ}")
    g(f"s_sub_u32 s3, {s(sR16)}, {s(sWV)}")
    g(f"s_mul_i32 s3, s3, {54 * KB}")
    g(f"s_add_u32 {s(sT4)}, {s(sT4)}, s3")
    g(f"s_mul_i32 s3, {s(sWV)}, 14")
    g(f"s_cmp_eq_u32 {s(sWV)}, 3")
    g(f"s_cselect_b32 s3, 41, s3")
    g(f"s_lshl_b32 s3, s3, 10")
    g(f"s_add_u32 {s(sT4)}, {s(sT4)}, s3")
    g(f"s_add_u32 {s(sT4)}, {s(sT4)}, {HF}")
    g(f"s_cmp_ge_u32 {s(sWV)}, 2")
    g(f"s_cselect_b32 {s(sX14)}, 12, 13")
    g(f"s_lshl_b32 {s(sX14)}, {s(sX14)}, 10")
    g(f"s_cmp_eq_u32 {s(sLAYER)}, 0")
    g(f"s_cselect_b32 {s(SPF + 2)}, {WS_END}, 0")
    set_goff(WF1, 160 * KB, 0)
    side = [lambda G=G: dma_group(G, srd=SPF) for G in range(EARLY)]
    reg_gemm(14, 40, 28, 152, w4reg, sT4, 54, side, True)
    stamp(14)
    g(f"s_cmp_eq_u32 {s(sLAYER)}, 1")
    g("s_cbranch_scc1 L_final")
    g(f"s_mov_b32 {s(sLAYER)}, 1")
    g(f"s_add_u32 {s(sRTG)}, {s(sRTG)}, 16")
    g.fence()
    g.label("L_epi4_x")
    epi_x()
    stamp(15)

    def pre_arrive():
        lp, lo = g.newlabel("ipoll"), g.newlabel("ipollout")
        set_aux(P_DBG, 256)
        g(f"v_mov_b32 {v(T[8])}, 0")
        g(f"s_mov_b32 {s(sITER)}, 0")
        g.label(lp)
        g(f"buffer_load_dword {v(T[9])}, {v(T[8])}, {s(SAUX, 4)}, 0 offen sc1")
        g(f"s_add_u32 {s(sITER)}, {s(sITER)}, 1")
        g(f"s_cmp_gt_u32 {s(sITER)}, 0x40000")
        g(f"s_cbranch_scc1 {lo}")
        g("s_waitcnt vmcnt(0)")
        g(f"v_cmp_eq_u32 vcc, 0, {v(T[9])}")
        g("s_nop 0")
        g(f"s_cbranch_vccnz {lp}")
        g.label(lo)
        g("s_waitcnt vmcnt(0)")

    def pre_arrive_guard():
        lab = g.newlabel("noipoll")
        g(f"s_cmp_lg_u32 {s(sLAYER)}, 0")
        g(f"s_cbranch_scc1 {lab}")
        pre_arrive()
        g.label(lab)

    def mid():
        lab = g.newlabel("nomid")
        g(f"s_cmp_eq_u32 {s(sLAYER)}, 0")
        g(f"s_cbranch_scc1 {lab}")
        sv = begin_skip()
        q = list(g.vmq)
        for G in range(EARLY, NRG):
            dma_group(G)
        g.vmq = q
        end_skip(sv)
        g.label(lab)
    handoff((sAM,), (sWM,), sRTG, mid=mid, pre_arrive=pre_arrive_guard)
    g(f"s_mov_b64 {s(sAM, 2)}, 1")
    g(f"s_mov_b64 {s(sWM, 2)}, 1")
    if STAMPS:
        g(f"s_add_u32 {s(sSIDX)}, {s(sSIDX)}, 16")
    g(f"s_cmp_lg_u32 {s(sLAYER)}, 0")
    g("s_cbranch_scc1 L_k1")
    set_goff(WF1, 160 * KB, 0)
    for G in range(NRG):
        dma_group(G)
    g.fence()
    g("s_branch L_k1")
    g.label("L_final")
    g.nop(2)
    epi_pack()
    set_aux(P_OUT, 2048 * 1280)
    g(f"v_and_b32 {v(T[0])}, 15, {v(vLANE)}")
    g(f"v_mul_u32_u24 {v(T[0])}, 1280, {v(T[0])}")
    g(f"v_bfe_u32 {v(T[1])}, {v(vLANE)}, 4, 1")
    g(f"v_lshl_add_u32 {v(T[0])}, {v(T[1])}, 5, {v(T[0])}")
    g(f"v_lshrrev_b32 {v(T[1])}, 5, {v(vLANE)}")
    g(f"v_lshl_add_u32 {v(T[0])}, {v(T[1])}, 4, {v(T[0])}")
    g(f"s_mul_i32 {s(sT0)}, {s(sR16)}, {16 * 1280}")
    g(f"s_mul_i32 {s(sT1)}, {s(sCT)}, 160")
    g(f"s_add_u32 {s(sT0)}, {s(sT0)}, {s(sT1)}")
    for i in range(3):
        g(f"v_permlane16_swap_b32 {v(PK + 4 * i)}, {v(PK + 4 * i + 2)}")
        g(f"v_permlane16_swap_b32 {v(PK + 4 * i + 1)}, {v(PK + 4 * i + 3)}")
    g(f"buffer_store_dwordx4 {v(PK, 4)}, {v(T[0])}, {s(SAUX, 4)}, {s(sT0)} offen")
    g(f"buffer_store_dwordx4 {v(PK + 4, 4)}, {v(T[0])}, {s(SAUX, 4)}, {s(sT0)} offen offset:64")
    g("s_mov_b32 exec_lo, 0xffff")
    g("s_mov_b32 exec_hi, 0xffff")
    g(f"buffer_store_dwordx4 {v(PK + 8, 4)}, {v(T[0])}, {s(SAUX, 4)}, {s(sT0)} offen offset:128")
    g("s_mov_b64 exec, -1")
    if STAMPS:
        g("s_waitcnt vmcnt(0)")
        stamp(15)
        lab = g.newlabel("nost")
        g(f"s_cmp_lg_u32 {s(sWV)}, 0")
        g(f"s_cbranch_scc1 {lab}")
        g(f"s_lshl_b32 s3, s2, 8")
        g(f"s_add_u32 s3, s3, {STAMP}")
        g(f"v_lshlrev_b32 {v(T[0])}, 2, {v(vLANE)}")
        g(f"buffer_store_dword {v(vSTAMP)}, {v(T[0])}, {s(SWS, 4)}, s3 offen")
        g.label(lab)
    g.label("L_end")
    g("s_endpgm")


def build():
    prologue()
    prep()
    g.vmq = [(("G", G), False) for G in range(NRG) for _ in range(2)]
    g.lgq = []
    k1()
    k2()
    k3()
    k4()
    head = open("cdna_kernels/" + NAME + ".s.ref").read().splitlines()
    hdr = [l for l in head[:12] if l.startswith(";") and "@launch" not in l]
    out = "\n".join(hdr) + f"\n; @launch grid=(256,1,1) block=(256,1,1) lds={LDS_BYTES}\n"
    out += '.amdgcn_target "amdgcn-amd-amdhsa--gfx950"\n.text\n'
    out += f".globl {NAME}_kernel\n.p2align 8\n.type {NAME}_kernel,@function\n{NAME}_kernel:\n"
    out += g.text()
    out += f'.section .rodata,"a"\n.p2align 6\n.amdhsa_kernel {NAME}_kernel\n'
    out += f"  .amdhsa_next_free_vgpr 512\n  .amdhsa_next_free_sgpr {NSGPR}\n  .amdhsa_accum_offset 256\n"
    out += "  .amdhsa_group_segment_fixed_size 0\n  .amdhsa_kernarg_size 80\n  .amdhsa_user_sgpr_count 2\n"
    out += "  .amdhsa_user_sgpr_kernarg_segment_ptr 1\n  .amdhsa_system_sgpr_workgroup_id_x 1\n"
    out += "  .amdhsa_float_denorm_mode_32 3\n"
    out += ".end_amdhsa_kernel\n"
    return out


if __name__ == "__main__":
    path = [x for x in sys.argv[1:] if not x.startswith("-")]
    path = path[0] if path else "cdna_kernels/" + NAME + ".s"
    text = build()
    open(path, "w").write(text)
    import json
    json.dump(LAYOUT, open("layout.json", "w"))
    print(f"wrote {path}: {g.n_instr} instructions, ws bytes {WS_END}")
```

```python
import sys
from asmdsl import Asm, v, a, s

NAME = "interleave_layers__linear_attn_block__glu_gated_bilinear__prompt"
STAMPS = "--stamps" in sys.argv
OPT = {}
for arg in sys.argv[1:]:
    if arg.startswith("-D"):
        k, _, val = arg[2:].partition("=")
        OPT[k] = int(val) if val else 1

KB = 1024
CNT = 0
STAMP = 16 * KB
CS1 = 128 * KB
CS3 = CS1 + 16 * 20 * 512
ST = CS3 + 32 * 20 * 512
STSZ = 128 * KB
KVP = ST + 4 * STSZ
KVSZ = 1024 * KB
WF1 = KVP + 2 * KVSZ
WF2 = WF1 + 16 * 160 * KB
WF3 = WF2 + 8 * 100 * KB
WF4 = WF3 + 16 * 280 * KB
XF = WF4 + 8 * 270 * KB + 8 * KB
XSZ = 128 * 20 * KB
OF = XF + 4 * XSZ
HF = OF + 2 * XSZ
HSZ = 128 * 54 * KB
WS_END = HF + 2 * HSZ
LAYOUT = dict(CNT=CNT, STAMP=STAMP, CS1=CS1, CS3=CS3, ST=ST, STSZ=STSZ, KVP=KVP, KVSZ=KVSZ, WF1=WF1, WF2=WF2,
              WF3=WF3, WF4=WF4, XF=XF, XSZ=XSZ, OF=OF, HF=HF, HSZ=HSZ, WS_END=WS_END)

RING = 144 * KB
NRG = RING // (8 * KB)
EARLY = 12
RED = 96 * KB
KVS = 96 * KB
KVF = KVS + 36 * KB
TBL = 156 * KB
CST = TBL + 1024
LDS_BYTES = 160 * KB

SWS, SAUX, SPF = 4, 8, 12
sRB, sC, sWV, sCT = 16, 17, 18, 19
P_X0, P_WQKV, P_WO, P_BX, P_WG, P_WU, P_WD, P_OUT, P_DBG, P_WS = 20, 22, 24, 26, 28, 30, 32, 34, 36, 38
sRH, sLAYER, sWLDS, sGOFF, sXI, sRTG, sCTG, sITER = 40, 41, 42, 43, 44, 45, 46, 47
sAM, sWM = 48, 50
sT0, sT1, sT2, sT3, sT4, sT5 = 52, 53, 54, 55, 56, 57
sXOFF = 58
sPFOFF = 62
sEPS6 = 64
sM8 = 66
sMG0 = 68
sRED = 70
sR16 = 71
sRA = 72
sRT = 74
sSIDX = 76
sJ = 78
sX14 = 94
NSGPR = 96

vLANE, vL16, vDMA, vLD1, vLD2, vCNT, vKVS, vKVD, vSTAMP, vT16 = range(10)
T = list(range(10, 20))
XR = 20

g = Asm()


STAMP_NAMES = {}


def stamp(i, name=None):
    if not STAMPS:
        return
    STAMP_NAMES[i] = name
    g(f"{'s_memtime' if OPT.get('CYC') else 's_memrealtime'} {s(sRT, 2)}")
    g.wait_all(vm=False)
    g(f"s_add_u32 m0, {s(sSIDX)}, {i}")
    g("s_nop 0")
    g(f"v_writelane_b32 {v(vSTAMP)}, {s(sRT)}, m0")


def lds_base(addr):
    return (vL16, vLD1, vLD2)[addr >> 16], addr & 0xFFFF


def begin_skip():
    return (g.slot, dict(g.valu_w), dict(g.mfma_w), dict(g.mfma_c), dict(g.store_r), dict(g.trans_w), dict(g.valu_sw))


def end_skip(sv):
    pre = sv[0]
    for d in (g.valu_w, g.mfma_c, g.store_r, g.trans_w, g.valu_sw):
        for r in d:
            if d[r] >= pre:
                d[r] = pre - 1
    for r in g.mfma_w:
        if g.mfma_w[r][0] >= pre:
            g.mfma_w[r] = (pre - 1, g.mfma_w[r][1])
    for cur, old in ((g.valu_w, sv[1]), (g.mfma_w, sv[2]), (g.mfma_c, sv[3]), (g.store_r, sv[4]), (g.trans_w, sv[5]),
                     (g.valu_sw, sv[6])):
        for r in old:
            if r not in cur:
                cur[r] = old[r]
    if g.m0_w >= pre:
        g.m0_w = pre - 1
    g.slot = pre


def dma_group(G, srd=SWS, maybe=False):
    g(f"s_add_u32 m0, {s(sWLDS)}, {(G % NRG) * 8 * KB}")
    g.vm(f"buffer_load_dwordx4 {v(vDMA)}, {s(srd, 4)}, {s(sGOFF)} offen sc1 lds", tag=("G", G), maybe=maybe)
    g.vm(f"buffer_load_dwordx4 {v(vDMA)}, {s(srd, 4)}, {s(sGOFF)} offen offset:1024 sc1 lds", tag=("G", G), maybe=maybe)
    g(f"s_add_u32 {s(sGOFF)}, {s(sGOFF)}, {8 * KB}")


def handoff(arrive_mask, wait_mask, target, mid=None, pre_arrive=None, st=None):
    def mask(m):
        return s(m[0], 2) if isinstance(m, tuple) else str(m)
    g.wait_all()
    g("s_barrier")
    if st is not None:
        stamp(st, "stores done")
    l1, l2, lp, lo = g.newlabel("noarr"), g.newlabel("nopoll"), g.newlabel("poll"), g.newlabel("pollout")
    g(f"s_cmp_lg_u32 {s(sWV)}, 0")
    g(f"s_cbranch_scc1 {l1}")
    sv = begin_skip()
    if pre_arrive:
        pre_arrive()
    g(f"v_mov_b32 {v(T[9])}, 1")
    g(f"s_mov_b64 exec, {mask(arrive_mask)}")
    g(f"buffer_atomic_add {v(T[9])}, {v(vCNT)}, {s(SWS, 4)}, 0 offen sc1")
    g("s_mov_b64 exec, -1")
    end_skip(sv)
    g.label(l1)
    if mid:
        mid()
    g(f"s_cmp_lg_u32 {s(sWV)}, 0")
    g(f"s_cbranch_scc1 {l2}")
    sv = begin_skip()
    g(f"s_mov_b64 exec, {mask(wait_mask)}")
    g(f"s_mov_b32 {s(sITER)}, 0")
    g.label(lp)
    g(f"buffer_load_dword {v(T[9])}, {v(vCNT)}, {s(SWS, 4)}, 0 offen sc1")
    g(f"s_add_u32 {s(sITER)}, {s(sITER)}, 1")
    g(f"s_cmp_gt_u32 {s(sITER)}, 0x40000")
    g(f"s_cbranch_scc1 {lo}")
    g("s_waitcnt vmcnt(0)")
    g(f"v_cmp_gt_u32 vcc, {s(target)}, {v(T[9])}")
    g("s_nop 0")
    g(f"s_cbranch_vccnz {lp}")
    g.label(lo)
    g("s_mov_b64 exec, -1")
    end_skip(sv)
    g.label(l2)
    g("s_barrier")


def reduce_g(regs, tmps):
    for sw in ("v_permlane16_swap_b32", "v_permlane32_swap_b32"):
        for r, t in zip(regs, tmps):
            g(f"v_mov_b32 {v(t)}, {v(r)}")
        for r, t in zip(regs, tmps):
            g(f"{sw} {v(r)}, {v(t)}")
        for r, t in zip(regs, tmps):
            g(f"v_add_f32 {v(r)}, {v(r)}, {v(t)}")


def prologue():
    g(f"s_cmp_ge_u32 s2, 256")
    g("s_cbranch_scc1 L_end")
    g(f"s_load_dwordx16 {s(20, 16)}, s[0:1], 0")
    g(f"s_load_dwordx4 {s(36, 4)}, s[0:1], 64")
    if OPT.get("MAP", 0) == 0:
        g(f"s_and_b32 {s(sRB)}, s2, 7")
        g(f"s_lshl_b32 {s(sRB)}, {s(sRB)}, 1")
        g(f"s_bfe_u32 s3, s2, 0x10003")
        g(f"s_add_u32 {s(sRB)}, {s(sRB)}, s3")
        g(f"s_lshr_b32 {s(sC)}, s2, 4")
    elif OPT["MAP"] == 1:
        g(f"s_bfe_u32 {s(sRB)}, s2, 0x20001")
        g(f"s_lshl_b32 {s(sRB)}, {s(sRB)}, 2")
        g(f"s_bfe_u32 s3, s2, 0x20003")
        g(f"s_add_u32 {s(sRB)}, {s(sRB)}, s3")
        g(f"s_and_b32 {s(sC)}, s2, 1")
        g(f"s_lshl_b32 {s(sC)}, {s(sC)}, 3")
        g(f"s_lshr_b32 s3, s2, 5")
        g(f"s_add_u32 {s(sC)}, {s(sC)}, s3")
    else:
        g(f"s_bfe_u32 {s(sRB)}, s2, 0x10002")
        g(f"s_lshl_b32 {s(sRB)}, {s(sRB)}, 3")
        g(f"s_bfe_u32 s3, s2, 0x30003")
        g(f"s_add_u32 {s(sRB)}, {s(sRB)}, s3")
        g(f"s_and_b32 {s(sC)}, s2, 3")
        g(f"s_lshl_b32 {s(sC)}, {s(sC)}, 2")
        g(f"s_lshr_b32 s3, s2, 6")
        g(f"s_add_u32 {s(sC)}, {s(sC)}, s3")
    g(f"s_lshr_b32 {s(sCT)}, {s(sC)}, 1")
    g(f"s_and_b32 {s(sRH)}, {s(sC)}, 1")
    g(f"v_lshrrev_b32 {v(T[0])}, 6, v0")
    g(f"v_lshlrev_b32 {v(vT16)}, 4, v0")
    g(f"v_readfirstlane_b32 {s(sWV)}, {v(T[0])}")
    g(f"v_mov_b32 {v(T[1])}, v0")
    g(f"v_and_b32 {v(vLANE)}, 63, v0")
    g(f"v_lshlrev_b32 {v(vL16)}, 4, {v(vLANE)}")
    g(f"s_lshl_b32 {s(sWLDS)}, {s(sWV)}, 11")
    g(f"v_add_u32 {v(vDMA)}, {s(sWLDS)}, {v(vL16)}")
    g(f"v_add_u32 {v(vLD1)}, 0x10000, {v(vL16)}")
    g(f"v_add_u32 {v(vLD2)}, 0x20000, {v(vL16)}")
    g(f"v_mov_b32 {v(vSTAMP)}, 0")
    g(f"s_mov_b32 {s(sSIDX)}, 0")
    g(f"s_mov_b32 {s(sLAYER)}, 0")
    g(f"s_mov_b32 {s(sXI)}, 0")
    g(f"s_mov_b32 {s(sRTG)}, 16")
    g(f"s_mov_b32 {s(sCTG)}, 32")
    g(f"s_mov_b64 {s(sAM, 2)}, 3")
    g(f"s_mov_b64 {s(sWM, 2)}, 7")
    g(f"s_mov_b32 {s(sEPS6)}, 0x358637bd")
    g(f"s_mov_b32 {s(sEPS6 + 1)}, 0x358637bd")
    g(f"s_mov_b32 {s(sM8)}, 0x00ff00ff")
    g(f"s_mov_b32 {s(sM8 + 1)}, 0x00ff00ff")
    g(f"s_mov_b64 {s(sMG0, 2)}, 0xffff")
    g(f"s_lshl_b32 {s(sRA)}, {s(sRB)}, 3")
    g(f"s_lshl_b32 s3, {s(sRH)}, 2")
    g(f"s_add_u32 {s(sR16)}, {s(sRA)}, s3")
    g(f"s_add_u32 {s(sR16)}, {s(sR16)}, {s(sWV)}")
    g(f"s_lshl_b32 s3, {s(sWV)}, 1")
    g(f"s_add_u32 {s(sRA)}, {s(sRA)}, s3")
    g(f"s_lshl_b32 s3, {s(sRB)}, 8")
    g(f"v_mov_b32 {v(vCNT)}, s3")
    g(f"s_lshl_b32 s3, {s(sC)}, 8")
    g(f"s_add_u32 s3, s3, 4096")
    g(f"v_writelane_b32 {v(vCNT)}, s3, 1")
    g(f"s_xor_b32 s3, s3, 256")
    g(f"v_writelane_b32 {v(vCNT)}, s3, 2")
    t, head, rem, e, dq, es, ed, x0, x1 = T[1], T[2], T[3], T[4], T[5], T[6], T[7], T[8], T[9]
    g(f"v_cmp_le_u32 vcc, 100, {v(t)}")
    g(f"v_cndmask_b32 {v(head)}, 0, 1, vcc")
    g(f"v_mul_u32_u24 {v(x0)}, 100, {v(head)}")
    g(f"v_sub_u32 {v(rem)}, {v(t)}, {v(x0)}")
    g(f"v_mul_u32_u24 {v(e)}, 205, {v(rem)}")
    g(f"v_lshrrev_b32 {v(e)}, 10, {v(e)}")
    g(f"v_mul_u32_u24 {v(x0)}, 5, {v(e)}")
    g(f"v_sub_u32 {v(dq)}, {v(rem)}, {v(x0)}")
    g(f"v_mad_u32_u24 {v(e)}, {v(head)}, 20, {v(e)}")
    g(f"v_mad_u32_u24 {v(dq)}, {v(head)}, 5, {v(dq)}")
    g(f"v_add_u32 {v(es)}, 8, {v(e)}")
    g(f"v_mov_b32 {v(ed)}, {v(e)}")
    g(f"v_subrev_u32 {v(x0)}, 200, {v(t)}")
    g(f"v_cmp_le_u32 vcc, 205, {v(t)}")
    g(f"v_cndmask_b32 {v(x1)}, 48, 49, vcc")
    g(f"v_cmp_le_u32 vcc, 200, {v(t)}")
    g(f"v_cndmask_b32 {v(dq)}, {v(dq)}, {v(x0)}, vcc")
    g(f"v_cndmask_b32 {v(es)}, {v(es)}, 0, vcc")
    g(f"v_cndmask_b32 {v(ed)}, {v(ed)}, {v(x1)}, vcc")
    g(f"v_cmp_le_u32 vcc, 210, {v(t)}")
    g(f"v_cndmask_b32 {v(dq)}, {v(dq)}, 0, vcc")
    g(f"v_cndmask_b32 {v(ed)}, {v(ed)}, 64, vcc")
    g(f"v_lshrrev_b32 {v(x0)}, 2, {v(dq)}")
    g(f"v_lshrrev_b32 {v(x1)}, 4, {v(es)}")
    g(f"v_mad_u32_u24 {v(x0)}, {v(x0)}, 3, {v(x1)}")
    g(f"v_lshlrev_b32 {v(vKVS)}, 10, {v(x0)}")
    g(f"v_and_b32 {v(x0)}, 3, {v(dq)}")
    g(f"v_lshlrev_b32 {v(x0)}, 8, {v(x0)}")
    g(f"v_and_b32 {v(x1)}, 15, {v(es)}")
    g(f"v_lshl_add_u32 {v(x1)}, {v(x1)}, 4, {v(x0)}")
    g(f"v_add_u32 {v(vKVS)}, {v(vKVS)}, {v(x1)}")
    g(f"v_add_u32 {v(vKVS)}, {KVS}, {v(vKVS)}")
    g(f"v_lshrrev_b32 {v(x1)}, 4, {v(ed)}")
    g(f"v_lshlrev_b32 {v(vKVD)}, 11, {v(x1)}")
    g(f"v_lshrrev_b32 {v(x1)}, 3, {v(dq)}")
    g(f"v_lshl_add_u32 {v(vKVD)}, {v(x1)}, 10, {v(vKVD)}")
    g(f"v_add_u32 {v(vKVD)}, {v(vKVD)}, {v(x0)}")
    g(f"v_and_b32 {v(x1)}, 15, {v(ed)}")
    g(f"v_lshl_add_u32 {v(vKVD)}, {v(x1)}, 4, {v(vKVD)}")
    g(f"v_bfe_u32 {v(x1)}, {v(dq)}, 2, 1")
    g(f"v_lshl_add_u32 {v(vKVD)}, {v(x1)}, 3, {v(vKVD)}")
    g(f"v_add_u32 {v(vKVD)}, {KVF}, {v(vKVD)}")
    g("s_waitcnt lgkmcnt(0)")
    for srd in (SWS, SPF):
        g(f"s_mov_b32 {s(srd)}, {s(P_WS)}")
        g(f"s_and_b32 {s(srd + 1)}, {s(P_WS + 1)}, 0xffff")
        g(f"s_mov_b32 {s(srd + 2)}, {WS_END}")
        g(f"s_mov_b32 {s(srd + 3)}, 0x20000")
    stamp(0, "start")


def set_aux(ptr, nbytes):
    g(f"s_mov_b32 {s(SAUX)}, {s(ptr)}")
    g(f"s_and_b32 {s(SAUX + 1)}, {s(ptr + 1)}, 0xffff")
    g(f"s_mov_b32 {s(SAUX + 2)}, {nbytes}")
    g(f"s_mov_b32 {s(SAUX + 3)}, 0x20000")


def prep():
    l0 = g.newlabel("noinit")
    g(f"s_or_b32 s3, s2, {s(sWV)}")
    g(f"s_cmp_lg_u32 s3, 0")
    g(f"s_cbranch_scc1 {l0}")
    sv = begin_skip()
    set_aux(P_DBG, 256)
    g(f"v_lshlrev_b32 {v(T[0])}, 8, {v(vLANE)}")
    g(f"v_mov_b32 {v(T[1])}, 0")
    g(f"s_mov_b64 exec, 0xffffffff")
    g(f"buffer_store_dword {v(T[1])}, {v(T[0])}, {s(SWS, 4)}, 0 offen sc1")
    g("s_waitcnt vmcnt(0)")
    g(f"v_mov_b32 {v(T[2])}, 1")
    g(f"s_mov_b64 exec, 1")
    g(f"buffer_store_dword {v(T[2])}, {v(T[1])}, {s(SAUX, 4)}, 0 offen sc1")
    g("s_mov_b64 exec, -1")
    end_skip(sv)
    g.label(l0)

    set_aux(P_X0, 2048 * 1280)
    XL = 40
    g(f"v_and_b32 {v(T[0])}, 15, {v(vLANE)}")
    g(f"v_mul_u32_u24 {v(T[0])}, 1280, {v(T[0])}")
    g(f"v_lshrrev_b32 {v(T[1])}, 4, {v(vLANE)}")
    g(f"v_lshl_add_u32 {v(T[0])}, {v(T[1])}, 3, {v(T[0])}")
    g(f"s_mul_i32 {s(sT0)}, {s(sR16)}, {16 * 1280}")
    g(f"s_mul_i32 {s(sT1)}, {s(sCT)}, 160")
    g(f"s_add_u32 {s(sT0)}, {s(sT0)}, {s(sT1)}")
    for b in range(5):
        g.vm(f"buffer_load_dwordx2 {v(XL + 2 * b, 2)}, {v(T[0])}, {s(SAUX, 4)}, {s(sT0)} offen offset:{32 * b}", tag="x0")

    jTy0, jT0, jTy1, jT1, jSlot, jTy, jT, jRS, jB, jA, jBb, jC = [sJ + i for i in range(12)]
    rD, rS, rN, rC = sT0, sT1, sT2, sT3
    R0 = [sXOFF, sXOFF + 1, sXOFF + 2, sXOFF + 3]
    R1 = [sJ + 12, sJ + 13, sJ + 14, sJ + 15]
    lw1, lw2, lw3, ldone = [g.newlabel(x) for x in ("w1", "w2", "w3", "jobs")]
    g(f"s_mov_b32 {s(jTy1)}, 0")
    g(f"s_mov_b32 {s(jT1)}, 0")
    g(f"s_cmp_eq_u32 {s(sWV)}, 1")
    g(f"s_cbranch_scc1 {lw1}")
    g(f"s_cmp_eq_u32 {s(sWV)}, 2")
    g(f"s_cbranch_scc1 {lw2}")
    g(f"s_cmp_eq_u32 {s(sWV)}, 3")
    g(f"s_cbranch_scc1 {lw3}")
    g(f"s_mov_b32 {s(jTy0)}, 1")
    g(f"s_mov_b32 {s(jT0)}, {s(sRB)}")
    g(f"s_branch {ldone}")
    g.label(lw1)
    g(f"s_mov_b32 {s(jTy0)}, 1")
    g(f"s_add_u32 {s(jT0)}, {s(sRB)}, 16")
    g(f"s_cmp_lt_u32 {s(sRB)}, 4")
    g(f"s_cbranch_scc1 {ldone}")
    g(f"s_mov_b32 {s(jTy0)}, 3")
    g(f"s_mov_b32 {s(jTy1)}, 4")
    g(f"s_add_u32 {s(jT0)}, {s(sRB)}, 12")
    g(f"s_mov_b32 {s(jT1)}, {s(jT0)}")
    g(f"s_cmp_lt_u32 {s(sRB)}, 8")
    g(f"s_cbranch_scc1 {ldone}")
    g(f"s_mov_b32 {s(jTy0)}, 2")
    g(f"s_mov_b32 {s(jTy1)}, 0")
    g(f"s_lshl_b32 {s(jT0)}, {s(sRH)}, 3")
    g(f"s_add_u32 {s(jT0)}, {s(jT0)}, {s(sRB)}")
    g(f"s_sub_u32 {s(jT0)}, {s(jT0)}, 8")
    g(f"s_branch {ldone}")
    g.label(lw2)
    g(f"s_mov_b32 {s(jTy0)}, 3")
    g(f"s_mov_b32 {s(jTy1)}, 4")
    g(f"s_mov_b32 {s(jT0)}, {s(sRB)}")
    g(f"s_mov_b32 {s(jT1)}, {s(sRB)}")
    g(f"s_branch {ldone}")
    g.label(lw3)
    g(f"s_mov_b32 {s(jTy0)}, 5")
    g(f"s_lshl_b32 {s(jT0)}, {s(sRH)}, 4")
    g(f"s_add_u32 {s(jT0)}, {s(jT0)}, {s(sRB)}")
    g(f"s_mov_b32 {s(jTy1)}, 5")
    g(f"s_add_u32 {s(jT1)}, {s(jT0)}, 32")
    g(f"s_cmp_lt_u32 {s(jT0)}, 22")
    g(f"s_cbranch_scc1 {ldone}")
    g(f"s_mov_b32 {s(jTy1)}, 2")
    g(f"s_sub_u32 {s(jT1)}, {s(jT0)}, 6")
    g(f"s_cmp_lt_u32 {s(jT0)}, 26")
    g(f"s_cbranch_scc1 {ldone}")
    g(f"s_mov_b32 {s(jTy1)}, 0")
    g.label(ldone)

    cc, r4, vo, x0, x1 = T[2], T[3], T[4], T[5], T[6]
    g(f"v_and_b32 {v(cc)}, 15, {v(vLANE)}")
    g(f"v_lshrrev_b32 {v(r4)}, 4, {v(vLANE)}")
    g(f"s_mov_b32 {s(jSlot)}, 0")
    g(f"s_mov_b32 {s(jTy)}, {s(jTy0)}")
    g(f"s_mov_b32 {s(jT)}, {s(jT0)}")
    lloop, lt1, lt2, lt3, lt5, lkx, lissue, lnext, lsh = [g.newlabel(x) for x in
                                                         ("jloop", "t1", "t2", "t3", "t5", "kx", "issue", "jnext", "sh")]
    g.fence()
    g.label(lloop)
    g(f"s_mov_b32 {s(rN)}, 0")
    g(f"s_mov_b32 {s(rD)}, 0")
    g(f"s_mov_b32 {s(rS)}, 1024")
    g(f"s_mov_b32 {s(rC)}, -1")
    g(f"s_cmp_eq_u32 {s(jTy)}, 0")
    g(f"s_cbranch_scc1 {lnext}")
    g(f"s_cmp_eq_u32 {s(jTy)}, 1")
    g(f"s_cbranch_scc1 {lt1}")
    g(f"s_cmp_eq_u32 {s(jTy)}, 2")
    g(f"s_cbranch_scc1 {lt2}")
    g(f"s_cmp_eq_u32 {s(jTy)}, 5")
    g(f"s_cbranch_scc1 {lt5}")
    g.label(lt3)
    g(f"s_cmp_eq_u32 {s(jTy)}, 3")
    g(f"s_cselect_b32 {s(SAUX)}, {s(P_WG)}, {s(P_WU)}")
    g(f"s_cselect_b32 {s(SAUX + 1)}, {s(P_WG + 1)}, {s(P_WU + 1)}")
    g(f"s_and_b32 {s(SAUX + 1)}, {s(SAUX + 1)}, 0xffff")
    g(f"s_mov_b32 {s(SAUX + 2)}, {640 * 3456}")
    g(f"s_mov_b32 {s(SAUX + 3)}, 0x20000")
    g(f"s_mov_b32 {s(jRS)}, 3456")
    g(f"s_mov_b32 {s(rN)}, 7")
    g(f"s_mov_b32 {s(rS)}, 2048")
    g(f"s_sub_u32 s3, {s(jTy)}, 3")
    g(f"s_mul_i32 {s(rD)}, {s(sC)}, 20")
    g(f"s_add_u32 {s(rD)}, {s(rD)}, {s(jT)}")
    g(f"s_mul_i32 {s(rD)}, {s(rD)}, 14")
    g(f"s_add_u32 {s(rD)}, {s(rD)}, s3")
    g(f"s_lshl_b32 {s(rD)}, {s(rD)}, 10")
    g(f"s_add_u32 {s(rD)}, {s(rD)}, {WF3}")
    g(f"s_lshl_b32 {s(rC)}, {s(sC)}, 1")
    g(f"s_add_u32 {s(rC)}, {s(rC)}, s3")
    g(f"s_mul_i32 {s(rC)}, {s(rC)}, 20")
    g(f"s_add_u32 {s(rC)}, {s(rC)}, {s(jT)}")
    g(f"s_lshl_b32 {s(rC)}, {s(rC)}, 9")
    g(f"s_add_u32 {s(rC)}, {s(rC)}, {CS3}")
    g(f"s_cmp_eq_u32 {s(sC)}, 15")
    g(f"s_cselect_b32 s3, 4, 14")
    g(f"s_cselect_b32 {s(sT4)}, 8, 0")
    g(f"v_subrev_u32 {v(x0)}, {s(sT4)}, {v(cc)}")
    g(f"v_cmp_le_u32 vcc, 12, {v(cc)}")
    g(f"v_cndmask_b32 {v(x0)}, {v(cc)}, {v(x0)}, vcc")
    g(f"v_lshlrev_b32 {v(vo)}, 4, {v(x0)}")
    g(f"s_mul_i32 {s(sT4)}, {s(sC)}, 224")
    g(f"v_add_u32 {v(vo)}, {s(sT4)}, {v(vo)}")
    g(f"v_bfrev_b32 {v(x1)}, 1")
    g(f"v_cmp_gt_u32 {s(sT4, 2)}, s3, {v(cc)}")
    g(f"v_cmp_le_u32 vcc, 12, {v(cc)}")
    g(f"s_or_b64 vcc, vcc, {s(sT4, 2)}")
    g(f"v_cndmask_b32 {v(vo)}, {v(x1)}, {v(vo)}, vcc")
    g(f"v_cmp_le_u32 vcc, 14, {v(cc)}")
    g(f"v_cndmask_b32 {v(vo)}, {v(vo)}, {v(x1)}, vcc")
    g(f"s_branch {lkx}")
    g.label(lt1)
    set_aux(P_WQKV, 640 * 3840)
    g(f"s_mov_b32 {s(jRS)}, 3840")
    g(f"s_mov_b32 {s(rN)}, 8")
    g(f"s_mul_i32 {s(rC)}, {s(sC)}, 20")
    g(f"s_add_u32 {s(rC)}, {s(rC)}, {s(jT)}")
    g(f"s_lshl_b32 {s(rD)}, {s(rC)}, 13")
    g(f"s_add_u32 {s(rD)}, {s(rD)}, {WF1}")
    g(f"s_lshl_b32 {s(rC)}, {s(rC)}, 9")
    g(f"s_add_u32 {s(rC)}, {s(rC)}, {CS1}")
    g(f"v_mul_u32_u24 {v(x0)}, 205, {v(cc)}")
    g(f"v_lshrrev_b32 {v(x0)}, 10, {v(x0)}")
    g(f"v_mul_u32_u24 {v(x1)}, 5, {v(x0)}")
    g(f"v_sub_u32 {v(vo)}, {v(cc)}, {v(x1)}")
    g(f"v_lshlrev_b32 {v(vo)}, 4, {v(vo)}")
    g(f"v_add_u32 {v(x1)}, 1, {v(x0)}")
    g(f"v_cmp_eq_u32 vcc, 2, {v(x0)}")
    g(f"v_cndmask_b32 {v(x1)}, {v(x1)}, 0, vcc")
    g(f"s_movk_i32 s3, 1280")
    g(f"v_mad_u32_u24 {v(vo)}, {v(x1)}, s3, {v(vo)}")
    g(f"s_mul_i32 s3, {s(sC)}, 80")
    g(f"v_add_u32 {v(vo)}, s3, {v(vo)}")
    g(f"v_bfrev_b32 {v(x1)}, 1")
    g(f"v_cmp_eq_u32 vcc, 15, {v(cc)}")
    g(f"v_cndmask_b32 {v(vo)}, {v(vo)}, {v(x1)}, vcc")
    g.label(lkx)
    g(f"s_lshr_b32 {s(jB)}, {s(jT)}, 1")
    g(f"s_mul_i32 {s(jB)}, {s(jB)}, 80")
    g(f"s_and_b32 s3, {s(jT)}, 1")
    g(f"s_lshl_b32 s3, s3, 5")
    g(f"s_add_u32 {s(jB)}, {s(jB)}, s3")
    g(f"s_mov_b32 {s(jA)}, 8")
    g(f"s_mov_b32 {s(jBb)}, 4")
    g(f"s_mov_b32 {s(jC)}, 16")
    g(f"s_cmp_lt_u32 {s(jT)}, 16")
    g(f"s_cbranch_scc1 {lissue}")
    g(f"s_sub_u32 {s(jB)}, {s(jT)}, 16")
    g(f"s_mul_i32 {s(jB)}, {s(jB)}, 160")
    g(f"s_add_u32 {s(jB)}, {s(jB)}, 64")
    g(f"s_mov_b32 {s(jA)}, 80")
    g(f"s_mov_b32 {s(jBb)}, 8")
    g(f"s_mov_b32 {s(jC)}, 4")
    g(f"s_branch {lissue}")
    g.label(lt2)
    set_aux(P_WO, 640 * 1280)
    g(f"s_mul_i32 {s(rD)}, {s(sCT)}, 20")
    g(f"s_add_u32 {s(rD)}, {s(rD)}, {s(jT)}")
    g(f"s_mul_i32 {s(rD)}, {s(rD)}, {5 * KB}")
    g(f"s_add_u32 {s(rD)}, {s(rD)}, {WF2}")
    g(f"s_mul_i32 {s(jB)}, {s(jT)}, 40")
    g(f"s_mov_b32 {s(jA)}, 8")
    g(f"s_mov_b32 {s(jBb)}, 4")
    g(f"s_mov_b32 {s(jC)}, 16")
    g(f"s_cmp_lt_u32 {s(jT)}, 16")
    g(f"s_cbranch_scc1 {lsh}")
    g(f"s_sub_u32 {s(jB)}, {s(jT)}, 16")
    g(f"s_mul_i32 {s(jB)}, {s(jB)}, 160")
    g(f"s_add_u32 {s(jB)}, {s(jB)}, 32")
    g(f"s_mov_b32 {s(jA)}, 80")
    g(f"s_mov_b32 {s(jBb)}, 40")
    g(f"s_mov_b32 {s(jC)}, 4")
    g(f"s_branch {lsh}")
    g.label(lt5)
    set_aux(P_WD, 1728 * 1280)
    g(f"s_mul_i32 {s(rD)}, {s(sCT)}, 54")
    g(f"s_add_u32 {s(rD)}, {s(rD)}, {s(jT)}")
    g(f"s_mul_i32 {s(rD)}, {s(rD)}, {5 * KB}")
    g(f"s_add_u32 {s(rD)}, {s(rD)}, {WF4}")
    g(f"s_mul_i32 s3, {s(jT)}, 171")
    g(f"s_lshr_b32 s3, s3, 9")
    g(f"s_mul_i32 {s(jB)}, s3, 16")
    g(f"s_lshl_b32 s3, {s(jT)}, 5")
    g(f"s_add_u32 {s(jB)}, {s(jB)}, s3")
    g(f"s_mov_b32 {s(jA)}, 8")
    g(f"s_mov_b32 {s(jBb)}, 4")
    g(f"s_mov_b32 {s(jC)}, 16")
    g(f"s_cmp_lt_u32 {s(jT)}, 46")
    g(f"s_cbranch_scc1 {lsh}")
    g(f"s_sub_u32 {s(jB)}, {s(jT)}, 46")
    g(f"s_mul_i32 {s(jB)}, {s(jB)}, 224")
    g(f"s_add_u32 {s(jB)}, {s(jB)}, 96")
    g(f"s_cmp_eq_u32 {s(jT)}, 53")
    g(f"s_cselect_b32 {s(jA)}, 48, 112")
    g(f"s_mov_b32 {s(jBb)}, 8")
    g(f"s_mov_b32 {s(jC)}, 4")
    g.label(lsh)
    g(f"s_mov_b32 {s(jRS)}, 1280")
    g(f"s_mov_b32 {s(rN)}, 5")
    g(f"s_mul_i32 s3, {s(sCT)}, 160")
    g(f"v_lshlrev_b32 {v(vo)}, 4, {v(cc)}")
    g(f"v_add_u32 {v(vo)}, s3, {v(vo)}")
    g(f"v_bfrev_b32 {v(x1)}, 1")
    g(f"v_cmp_le_u32 vcc, 10, {v(cc)}")
    g(f"v_cndmask_b32 {v(vo)}, {v(vo)}, {v(x1)}, vcc")
    g.fence()
    g.label(lissue)
    g(f"v_mad_u32_u24 {v(vo)}, {v(r4)}, {s(jRS)}, {v(vo)}")
    for r in (jB, jA, jBb, jC):
        g(f"s_mul_i32 {s(r)}, {s(r)}, {s(jRS)}")
    g(f"s_lshl_b32 {s(sT4)}, {s(sWV)}, 14")
    g(f"s_lshl_b32 s3, {s(jSlot)}, 13")
    g(f"s_add_u32 {s(sT4)}, {s(sT4)}, s3")
    for i in range(8):
        g(f"s_mov_b32 s3, {s(jB)}")
        if i & 2:
            g(f"s_add_u32 s3, s3, {s(jA)}")
        if i & 1:
            g(f"s_add_u32 s3, s3, {s(jBb)}")
        if i & 4:
            g(f"s_add_u32 s3, s3, {s(jC)}")
        g(f"s_add_u32 m0, {s(sT4)}, {i * 1024}")
        g(f"buffer_load_dwordx4 {v(vo)}, {s(SAUX, 4)}, s3 offen lds")
    g.label(lnext)
    g(f"s_cmp_eq_u32 {s(jSlot)}, 0")
    lsecond = g.newlabel("jsecond")
    g(f"s_cbranch_scc0 {lsecond}")
    for d, r in zip(R0, (rD, rS, rN, rC)):
        g(f"s_mov_b32 {s(d)}, {s(r)}")
    g(f"s_mov_b32 {s(jSlot)}, 1")
    g(f"s_mov_b32 {s(jTy)}, {s(jTy1)}")
    g(f"s_mov_b32 {s(jT)}, {s(jT1)}")
    g.fence()
    g(f"s_branch {lloop}")
    g.label(lsecond)
    for d, r in zip(R1, (rD, rS, rN, rC)):
        g(f"s_mov_b32 {s(d)}, {s(r)}")

    g.wait_all()
    stamp(1, "prep loaded")
    for b in range(5):
        for h in range(2):
            g(f"v_lshlrev_b32 {v(XR + 4 * b + 2 * h)}, 16, {v(XL + 2 * b + h)}")
            g(f"v_and_b32 {v(XR + 4 * b + 2 * h + 1)}, 0xffff0000, {v(XL + 2 * b + h)}")
    ta, ones, FR, CS, c0 = T[0], 60, 64, 96, 128
    g(f"v_lshrrev_b32 {v(T[1])}, 2, {v(vLANE)}")
    g(f"v_lshlrev_b32 {v(ta)}, 8, {v(T[1])}")
    g(f"v_and_b32 {v(T[1])}, 3, {v(vLANE)}")
    g(f"v_lshl_add_u32 {v(ta)}, {v(T[1])}, 3, {v(ta)}")
    g(f"s_lshl_b32 s3, {s(sWV)}, 14")
    g(f"v_add_u32 {v(ta)}, s3, {v(ta)}")
    for i in range(4):
        g(f"v_mov_b32 {v(ones + i)}, 0x3f803f80")
    g(f"v_lshlrev_b32 {v(T[2])}, 2, {v(vLANE)}")
    g(f"s_mov_b32 {s(jSlot)}, 0")
    lo, lend, lnocs = g.newlabel("oloop"), g.newlabel("oend"), g.newlabel("nocs")
    lskip = g.newlabel("oskip")
    g.fence()
    g.label(lo)
    g(f"s_cmp_eq_u32 {s(R0[2])}, 0")
    g(f"s_cbranch_scc1 {lskip}")
    for nb in range(8):
        for h in range(2):
            g(f"ds_read_b64_tr_b16 {v(FR + 4 * nb + 2 * h, 2)}, {v(ta)} offset:{h * 4096 + nb * 32}")
    g("s_waitcnt lgkmcnt(0)")
    for nb in range(8):
        g(f"v_mfma_f32_16x16x32_bf16 {v(CS + 4 * nb, 4)}, {v(ones, 4)}, {v(FR + 4 * nb, 4)}, 0")
    lst = g.newlabel("stdone")
    for nb in range(8):
        if nb in (5, 7):
            g(f"s_cmp_eq_u32 {s(R0[2])}, {nb}")
            g(f"s_cbranch_scc1 {lst}")
        g(f"buffer_store_dwordx4 {v(FR + 4 * nb, 4)}, {v(vL16)}, {s(SWS, 4)}, {s(R0[0])} offen sc1")
        g(f"s_add_u32 {s(R0[0])}, {s(R0[0])}, {s(R0[1])}")
    g.label(lst)
    g(f"s_cmp_eq_u32 {s(R0[3])}, -1")
    g(f"s_cbranch_scc1 {lskip}")
    g.nop(8)
    for half in range(2):
        g(f"v_mov_b32 {v(c0 + half)}, {v(CS + 16 * half)}")
        for q in range(1, 4):
            g(f"s_lshl_b64 vcc, {s(sMG0, 2)}, {16 * q}")
            g(f"v_cndmask_b32 {v(c0 + half)}, {v(c0 + half)}, {v(CS + 16 * half + 4 * q)}, vcc")
        g(f"buffer_store_dword {v(c0 + half)}, {v(T[2])}, {s(SWS, 4)}, {s(R0[3])} offen offset:{256 * half} sc1")
    g.label(lskip)
    g(f"s_cmp_eq_u32 {s(jSlot)}, 1")
    g(f"s_cbranch_scc1 {lend}")
    g(f"s_mov_b32 {s(jSlot)}, 1")
    for d, r in zip(R0, R1):
        g(f"s_mov_b32 {s(d)}, {s(r)}")
    g(f"v_add_u32 {v(ta)}, 8192, {v(ta)}")
    g.nop(8)
    g(f"s_branch {lo}")
    g.label(lend)
    g.nop(8)
    g("s_branch L_epi4_x")


def stats_loads(regs):
    g(f"s_sub_u32 {s(sT0)}, {s(sXI)}, 1")
    g(f"s_mul_i32 {s(sT0)}, {s(sT0)}, {STSZ}")
    g(f"s_lshl_b32 {s(sT1)}, {s(sRA)}, 10")
    g(f"s_add_u32 {s(sT0)}, {s(sT0)}, {s(sT1)}")
    g(f"s_add_u32 {s(sT0)}, {s(sT0)}, {ST}")
    t = regs[8]
    g(f"v_and_b32 {v(t)}, 15, {v(vLANE)}")
    g(f"v_lshlrev_b32 {v(t)}, 3, {v(t)}")
    g(f"v_and_b32 {v(regs[9])}, 48, {v(vLANE)}")
    g(f"v_lshl_add_u32 {v(t)}, {v(regs[9])}, 4, {v(t)}")
    for k in range(2):
        for j in range(2):
            g.vm(f"buffer_load_dwordx2 {v(regs[4 * k + 2 * j], 2)}, {v(t)}, {s(SWS, 4)}, {s(sT0)} offen "
                 f"offset:{k * 1024 + j * 128} sc1", tag="st")


def stats_ops(regs):
    r = regs
    ops = []

    def o1():
        g.wait(vm="st")
        for k in range(2):
            g(f"v_pk_add_f32 {v(r[4 * k], 2)}, {v(r[4 * k], 2)}, {v(r[4 * k + 2], 2)}")
    ops.append(o1)
    vals, tm = [r[0], r[1], r[4], r[5]], [r[2], r[3], r[6], r[7]]
    for sw in ("v_permlane16_swap_b32", "v_permlane32_swap_b32"):
        ops.append(lambda: [g(f"v_mov_b32 {v(t)}, {v(x)}") for x, t in zip(vals[:2], tm[:2])])
        ops.append(lambda: [g(f"v_mov_b32 {v(t)}, {v(x)}") for x, t in zip(vals[2:], tm[2:])])
        ops.append(lambda sw=sw: [g(f"{sw} {v(x)}, {v(t)}") for x, t in zip(vals[:2], tm[:2])])
        ops.append(lambda sw=sw: [g(f"{sw} {v(x)}, {v(t)}") for x, t in zip(vals[2:], tm[2:])])
        ops.append(lambda: [g(f"v_add_f32 {v(x)}, {v(x)}, {v(t)}") for x, t in zip(vals[:2], tm[:2])])
        ops.append(lambda: [g(f"v_add_f32 {v(x)}, {v(x)}, {v(t)}") for x, t in zip(vals[2:], tm[2:])])
    for k in range(2):
        sm, sq, t = r[4 * k], r[4 * k + 1], r[4 * k + 2]

        def oa(sm=sm, sq=sq, t=t):
            g(f"v_mul_f32 {v(sm)}, 0xbacccccd, {v(sm)}")
            g(f"v_mul_f32 {v(sq)}, 0x3acccccd, {v(sq)}")

        def ob(sm=sm, sq=sq, t=t):
            g(f"v_fma_f32 {v(sq)}, -{v(sm)}, {v(sm)}, {v(sq)}")
            g(f"v_max_f32 {v(sq)}, 0, {v(sq)}")

        def oc(sm=sm, sq=sq, t=t):
            g(f"v_add_f32 {v(sq)}, 0x3727c5ac, {v(sq)}")
            g(f"v_rsq_f32 {v(sq)}, {v(sq)}")
        ops += [oa, ob, oc]

    def ow0():
        g(f"v_and_b32 {v(r[8])}, 15, {v(vLANE)}")
        g(f"s_lshl_b32 {s(sT0)}, {s(sWV)}, 8")
        g(f"s_add_u32 {s(sT0)}, {s(sT0)}, {TBL}")
        g(f"v_lshl_add_u32 {v(r[8])}, {v(r[8])}, 2, {s(sT0)}")
    ops.append(ow0)
    for k in range(2):
        ops.append(lambda k=k: (g.lg(f"ds_write_b32 {v(r[8])}, {v(r[4 * k])} offset:{64 * k}", tag="tw"),
                                g.lg(f"ds_write_b32 {v(r[8])}, {v(r[4 * k + 1])} offset:{128 + 64 * k}", tag="tw")))
    return ops


def cs_loads(regs, addr, base_const, per_tile):
    g(f"s_mul_i32 {s(sT2)}, {s(sC)}, {per_tile}")
    g(f"s_add_u32 {s(sT2)}, {s(sT2)}, {base_const}")
    g(f"v_lshrrev_b32 {v(addr)}, 2, {v(vT16)}")
    if per_tile == 2 * 20 * 512:
        g(f"v_lshrrev_b32 {v(regs[0])}, 9, {v(addr)}")
        g(f"v_mul_u32_u24 {v(regs[0])}, {20 * 512 - 512}, {v(regs[0])}")
        g(f"v_add_u32 {v(addr)}, {v(addr)}, {v(regs[0])}")
    else:
        g(f"v_and_b32 {v(addr)}, 511, {v(addr)}")
    ops = []
    for t in range(20):
        def ld(t=t):
            if t and t % 8 == 0:
                g(f"s_add_u32 {s(sT2)}, {s(sT2)}, 4096")
            g.vm(f"buffer_load_dword {v(regs[t])}, {v(addr)}, {s(SWS, 4)}, {s(sT2)} offen offset:{(t % 8) * 512} sc1",
                 tag="cs")
        ops.append(ld)
    return ops


def cs_sum_ops(regs, addr):
    ops = []

    def first():
        g.wait(vm="cs")
        g(f"v_add_f32 {v(regs[0])}, {v(regs[0])}, {v(regs[1])}")
    ops.append(first)
    for t in range(2, 20, 2):
        ops.append(lambda t=t: (g(f"v_add_f32 {v(regs[0])}, {v(regs[0])}, {v(regs[t])}"),
                                g(f"v_add_f32 {v(regs[0])}, {v(regs[0])}, {v(regs[t + 1])}")))

    def wr():
        g(f"v_lshrrev_b32 {v(addr)}, 2, {v(vT16)}")
        g(f"v_add_u32 {v(addr)}, {CST}, {v(addr)}")
        g.lg(f"ds_write_b32 {v(addr)}, {v(regs[0])}", tag="tw")
    ops.append(wr)
    return ops


def ring_gemm(NB, ACC, WB, NWB, XW, NXW, transposed, issued, bar_every, pre_ops, side, xoff):
    Q = 20 * NB
    NG = Q // 8
    D = NWB - 1

    def xload(t):
        for k in range(2):
            if k == 0:
                so, off = xoff, t * 1024
            else:
                so, off = xoff + 1, t * 1024
            g(f"s_add_u32 s3, {s(so)}, {off}")
            g.vm(f"buffer_load_dwordx4 {v(XW + (t % NXW) * 8 + 4 * k, 4)}, {v(vL16)}, {s(SWS, 4)}, s3 offen sc1",
                 tag=("X", t))

    def wread(q):
        base, off = lds_base((q * 1024) % RING)
        g.lg(f"ds_read_b128 {v(WB + (q % NWB) * 4, 4)}, {v(base)} offset:{off}", tag=("W", q))

    xload(0)
    xload(1)
    for op in pre_ops:
        op()
    for t in range(2, NXW):
        xload(t)
    bars = list(range(0, Q, bar_every))
    fifo = []
    side = sorted(side, key=lambda z: z[0])
    state = dict(issued=issued)

    def barrier_at(f0):
        nxt = min([b for b in bars if b > f0] + [Q])
        need = min(Q - 1, nxt - 1 + D) // 8
        assert need < state["issued"], (f0, need, state["issued"])
        g.wait(vm=[("G", i) for i in range(need + 1)])
        if not OPT.get("NOBAR"):
            g("s_barrier")
        free = f0 // 8
        while state["issued"] < NG and state["issued"] - NRG < free:
            if not OPT.get("NODMA"):
                fifo.append(lambda G=state["issued"]: dma_group(G))
            state["issued"] += 1

    barrier_at(0)
    for q in range(D):
        wread(q)
    for q in range(Q):
        t, nb = divmod(q, NB)
        if q in bars and q > 0:
            while fifo:
                fifo.pop(0)()
            barrier_at(q)
        if nb == 0:
            g.wait(vm=[("X", t)], lg=[("W", q)])
            if t >= 1 and t - 1 + NXW < 20 and not OPT.get("NOX"):
                fifo.insert(0, lambda tt=t - 1 + NXW: xload(tt))
        elif not OPT.get("NOWAITL"):
            g.wait(lg=[("W", q)])
        w = v(WB + (q % NWB) * 4, 4)
        for k in range(2):
            acc = v(ACC + (nb * 2 + k) * 4, 4)
            x = v(XW + (t % NXW) * 8 + 4 * k, 4)
            c = "0" if t == 0 else acc
            if transposed(nb):
                g(f"v_mfma_f32_16x16x32_bf16 {acc}, {w}, {x}, {c}")
            else:
                g(f"v_mfma_f32_16x16x32_bf16 {acc}, {x}, {w}, {c}")
            if k == 0 and q + D < Q:
                wread(q + D)
        if fifo:
            fifo.pop(0)()
        elif side and side[0][0] <= q:
            side.pop(0)[1]()
    while fifo:
        fifo.pop(0)()
    while side:
        side.pop(0)[1]()


def wpf_ops(n, base_const, per_ct, wave_starts, regname):
    g(f"s_mul_i32 {s(sPFOFF)}, {s(sCT)}, {per_ct}")
    g(f"s_add_u32 {s(sPFOFF)}, {s(sPFOFF)}, {base_const}")
    if wave_starts == "k2":
        g(f"s_mul_i32 s3, {s(sWV)}, {25 * KB}")
    else:
        g(f"s_mul_i32 s3, {s(sWV)}, 14")
        g(f"s_cmp_eq_u32 {s(sWV)}, 3")
        g(f"s_cselect_b32 s3, 41, s3")
        g(f"s_mul_i32 s3, s3, {5 * KB}")
    g(f"s_add_u32 {s(sPFOFF)}, {s(sPFOFF)}, s3")
    ops = []
    for i in range(n):
        def ld(i=i):
            if i and i % 4 == 0:
                g(f"s_add_u32 {s(sPFOFF)}, {s(sPFOFF)}, 4096")
            g.vm(f"buffer_load_dwordx4 {regname(i)}, {v(vL16)}, {s(SWS, 4)}, {s(sPFOFF)} offen offset:{(i % 4) * 1024} sc1",
                 tag=("WP", i))
        ops.append(ld)
    return ops


def reg_gemm(NT, XW, NXW, ACC, wreg, xbase, ntot, side, skip_last):
    for p in range(4):
        g(f"s_add_u32 s3, {s(sWV)}, {p + 1}")
        g(f"s_and_b32 s3, s3, 3")
        g(f"s_mul_i32 s3, s3, {ntot * KB}")
        g(f"s_add_u32 {s(sXOFF + p)}, {s(xbase)}, s3")
    N = 4 * NT

    def xload(i):
        p, t = divmod(i, NT)
        if skip_last and t == NT - 1:
            g(f"s_add_u32 s3, {s(sXOFF + p)}, {s(sX14)}")
        else:
            g(f"s_add_u32 s3, {s(sXOFF + p)}, {t * KB}")
        g.vm(f"buffer_load_dwordx4 {v(XW + (i % NXW) * 4, 4)}, {v(vL16)}, {s(SWS, 4)}, s3 offen sc1", tag=("X", i))

    for i in range(min(NXW, N)):
        xload(i)
    ra = [T[0], T[1], T[2]]
    for p in range(3):
        g(f"s_add_u32 s3, {s(sWV)}, {p + 1}")
        g(f"s_and_b32 s3, s3, 3")
        g(f"s_mul_i32 s3, s3, {15 * KB}")
        g(f"s_add_u32 s3, s3, {RED + p * 5 * KB}")
        g(f"v_add_u32 {v(ra[p])}, s3, {v(vL16)}")
    g(f"s_mul_i32 s3, {s(sWV)}, {15 * KB}")
    g(f"s_add_u32 s3, s3, {RED}")
    g(f"v_add_u32 {v(T[3])}, s3, {v(vL16)}")
    fifo = []
    side = list(side)
    for i in range(N):
        p, t = divmod(i, NT)
        acc0 = ACC + (p & 1) * 20
        tags = [("X", i)] + [("WP", t * 5 + nb) for nb in range(5)]
        g.wait(vm=tags)
        sv = None
        if skip_last and t == NT - 1:
            lab = g.newlabel("skipk")
            g(f"s_cmp_ge_u32 {s(sWV)}, 2")
            g(f"s_cbranch_scc1 {lab}")
            sv = begin_skip()
        for nb in range(5):
            acc = v(acc0 + 4 * nb, 4)
            g(f"v_mfma_f32_16x16x32_bf16 {acc}, {wreg(t * 5 + nb)}, {v(XW + (i % NXW) * 4, 4)}, {'0' if t == 0 else acc}")
            if sv is None and nb in (1, 3) and fifo:
                fifo.pop(0)()
        if sv is not None:
            end_skip(sv)
            g.label(lab)
        if i + NXW < N:
            xload(i + NXW)
        elif side:
            side.pop(0)()
        if t == NT - 1 and p < 3:
            def mk(nb, p=p, acc0=acc0):
                return lambda: g.lg(f"ds_write_b128 {v(ra[p])}, {v(acc0 + 4 * nb, 4)} offset:{nb * 1024}", tag="rw")
            fifo += [lambda: None, lambda: None] + [mk(nb) for nb in range(5)]
    while fifo:
        fifo.pop(0)()
    while side:
        side.pop(0)()
    g.wait_all(vm=False)
    g("s_barrier")
    RR = 40
    for j in range(15):
        g.lg(f"ds_read_b128 {v(RR + 4 * j, 4)}, {v(T[3])} offset:{j * 1024}", tag=("R", j))
    accF = ACC + 20
    for p in range(3):
        g.wait(lg=[("R", p * 5 + 4)])
        for i in range(0, 20, 2):
            g(f"v_pk_add_f32 {v(accF + i, 2)}, {v(accF + i, 2)}, {v(RR + 20 * p + i, 2)}")
    for i in range(0, 20, 2):
        g(f"v_pk_add_f32 {v(XR + i, 2)}, {v(XR + i, 2)}, {v(accF + i, 2)}")


PK = 100


def epi_pack():
    for b in range(5):
        for h in range(2):
            g(f"v_cvt_pk_bf16_f32 {v(PK + 2 * b + h)}, {v(XR + 4 * b + 2 * h)}, {v(XR + 4 * b + 2 * h + 1)}")
    g(f"v_mov_b32 {v(PK + 10)}, {v(PK + 8)}")
    g(f"v_mov_b32 {v(PK + 11)}, {v(PK + 9)}")


def epi_x():
    epi_pack()
    g(f"s_mul_i32 {s(sT0)}, {s(sXI)}, {XSZ}")
    g(f"s_mul_i32 {s(sT1)}, {s(sR16)}, {20 * KB}")
    g(f"s_add_u32 {s(sT0)}, {s(sT0)}, {s(sT1)}")
    g(f"s_add_u32 {s(sT0)}, {s(sT0)}, {XF}")
    g(f"s_lshl_b32 {s(sT1)}, {s(sCT)}, 11")
    g(f"s_add_u32 {s(sT1)}, {s(sT1)}, {s(sT0)}")
    g.vm(f"buffer_store_dwordx4 {v(PK, 4)}, {v(vL16)}, {s(SWS, 4)}, {s(sT1)} offen sc1")
    g.vm(f"buffer_store_dwordx4 {v(PK + 4, 4)}, {v(vL16)}, {s(SWS, 4)}, {s(sT1)} offen offset:1024 sc1")
    for b in range(5):
        for h in range(2):
            g(f"v_lshlrev_b32 {v(XR + 4 * b + 2 * h)}, 16, {v(PK + 2 * b + h)}")
            g(f"v_and_b32 {v(XR + 4 * b + 2 * h + 1)}, 0xffff0000, {v(PK + 2 * b + h)}")
    g(f"v_permlane16_swap_b32 {v(PK + 8)}, {v(PK + 10)}")
    g(f"v_permlane16_swap_b32 {v(PK + 9)}, {v(PK + 11)}")
    g(f"s_lshr_b32 {s(sT1)}, {s(sCT)}, 1")
    g(f"s_lshl_b32 {s(sT1)}, {s(sT1)}, 10")
    g(f"s_and_b32 s3, {s(sCT)}, 1")
    g(f"s_lshl_b32 s3, s3, 9")
    g(f"s_add_u32 {s(sT1)}, {s(sT1)}, s3")
    g(f"s_add_u32 {s(sT1)}, {s(sT1)}, {s(sT0)}")
    g(f"s_add_u32 {s(sT1)}, {s(sT1)}, {16 * KB}")
    g(f"v_and_b32 {v(T[0])}, 15, {v(vLANE)}")
    g(f"v_lshrrev_b32 {v(T[1])}, 5, {v(vLANE)}")
    g(f"v_lshl_add_u32 {v(T[1])}, {v(T[1])}, 4, {v(T[0])}")
    g(f"v_lshlrev_b32 {v(T[1])}, 4, {v(T[1])}")
    g("s_mov_b32 exec_lo, 0xffff")
    g("s_mov_b32 exec_hi, 0xffff")
    g.vm(f"buffer_store_dwordx4 {v(PK + 8, 4)}, {v(T[1])}, {s(SWS, 4)}, {s(sT1)} offen sc1")
    g("s_mov_b64 exec, -1")
    sm, sq = T[2], T[4]
    g(f"v_pk_add_f32 {v(sm, 2)}, {v(XR, 2)}, {v(XR + 2, 2)}")
    g(f"v_pk_mul_f32 {v(sq, 2)}, {v(XR, 2)}, {v(XR, 2)}")
    g(f"v_pk_fma_f32 {v(sq, 2)}, {v(XR + 2, 2)}, {v(XR + 2, 2)}, {v(sq, 2)}")
    for i in range(4, 20, 2):
        g(f"v_pk_add_f32 {v(sm, 2)}, {v(sm, 2)}, {v(XR + i, 2)}")
        g(f"v_pk_fma_f32 {v(sq, 2)}, {v(XR + i, 2)}, {v(XR + i, 2)}, {v(sq, 2)}")
    g(f"v_add_f32 {v(T[2])}, {v(T[2])}, {v(T[3])}")
    g(f"v_add_f32 {v(T[3])}, {v(T[4])}, {v(T[5])}")
    reduce_g([T[2], T[3]], [T[4], T[5]])
    g(f"s_mul_i32 {s(sT0)}, {s(sXI)}, {STSZ}")
    g(f"s_lshl_b32 {s(sT1)}, {s(sR16)}, 10")
    g(f"s_add_u32 {s(sT0)}, {s(sT0)}, {s(sT1)}")
    g(f"s_lshl_b32 {s(sT1)}, {s(sCT)}, 7")
    g(f"s_add_u32 {s(sT0)}, {s(sT0)}, {s(sT1)}")
    g(f"s_add_u32 {s(sT0)}, {s(sT0)}, {ST}")
    g(f"v_lshlrev_b32 {v(T[0])}, 3, {v(T[0])}")
    g(f"s_mov_b64 exec, {s(sMG0, 2)}")
    g.vm(f"buffer_store_dwordx2 {v(T[2], 2)}, {v(T[0])}, {s(SWS, 4)}, {s(sT0)} offen sc1")
    g("s_mov_b64 exec, -1")
    g(f"s_add_u32 {s(sXI)}, {s(sXI)}, 1")


def set_xoff_ring():
    g(f"s_sub_u32 {s(sXOFF)}, {s(sXI)}, 1")
    g(f"s_mul_i32 {s(sXOFF)}, {s(sXOFF)}, {XSZ}")
    g(f"s_mul_i32 s3, {s(sRA)}, {20 * KB}")
    g(f"s_add_u32 {s(sXOFF)}, {s(sXOFF)}, s3")
    g(f"s_add_u32 {s(sXOFF)}, {s(sXOFF)}, {XF}")
    g(f"s_add_u32 {s(sXOFF + 1)}, {s(sXOFF)}, {20 * KB}")


def set_goff(base, per_tile, group):
    g(f"s_mul_i32 {s(sGOFF)}, {s(sC)}, {per_tile}")
    g(f"s_add_u32 {s(sGOFF)}, {s(sGOFF)}, {base + group * 8 * KB}")


def tbl_addrs(tN, tT):
    g(f"s_lshl_b32 s3, {s(sWV)}, 8")
    g(f"s_add_u32 s3, s3, {TBL}")
    if tN is not None:
        g(f"v_and_b32 {v(tN)}, 48, {v(vLANE)}")
        g(f"v_add_u32 {v(tN)}, s3, {v(tN)}")
    g(f"v_and_b32 {v(tT)}, 15, {v(vLANE)}")
    g(f"v_lshl_add_u32 {v(tT)}, {v(tT)}, 2, s3")


BC1 = "op_sel_hi:[1,0,1]"


def k1():
    ACC, WB, NWB, XW, NXW = 40, 104, 6, 128, 14
    X2 = list(range(240, 256))
    g.label("L_k1")
    stamp(2, "k1 go")
    set_xoff_ring()
    st_regs = X2[:10]
    cs_regs = T[:8] + X2[:12]
    side = []
    f = 12
    for op in stats_ops(st_regs):
        side.append((f, op))
        f += 1
    holder = []
    side.append((f, lambda: holder.extend(cs_loads(cs_regs, X2[12], CS1, 20 * 512))))
    for i in range(20):
        side.append((f + 1 + i, lambda: holder.pop(0)()))
    f += 40
    for op in cs_sum_ops(cs_regs, X2[12]):
        side.append((f, op))
        f += 1
    holder2 = []
    side.append((f, lambda: holder2.extend(wpf_ops(25, WF2, 100 * KB, "k2", lambda i: a(4 * i, 4)))))
    for i in range(25):
        side.append((f + 1 + 2 * i, lambda: holder2.pop(0)()))
    ring_gemm(8, ACC, WB, NWB, XW, NXW, lambda nb: nb >= 5, NRG, 16, [lambda: stats_loads(st_regs)], side, sXOFF)
    stamp(3, "k1 loop")
    g.wait_all(vm=False)
    g("s_barrier")
    set_goff(WF3, 280 * KB, 0)
    for G in range(EARLY):
        dma_group(G)
    NM4, RS4, RL4 = 128, 136, 144
    NMT, RST, RLT = 152, 156, 160
    CN, CTT = 164, 176
    PKF, VF, PQ = 188, 200, 212
    TM = 228
    tbl_addrs(T[0], T[1])
    for k in range(2):
        g.lg(f"ds_read_b128 {v(NM4 + 4 * k, 4)}, {v(T[0])} offset:{64 * k}", tag="e")
        g.lg(f"ds_read_b128 {v(RS4 + 4 * k, 4)}, {v(T[0])} offset:{128 + 64 * k}", tag="e")
        g.lg(f"ds_read_b32 {v(NMT + 2 * k)}, {v(T[1])} offset:{64 * k}", tag="e")
        g.lg(f"ds_read_b32 {v(RST + 2 * k)}, {v(T[1])} offset:{128 + 64 * k}", tag="e")
    g(f"v_and_b32 {v(T[2])}, 15, {v(vLANE)}")
    g(f"v_lshlrev_b32 {v(T[2])}, 2, {v(T[2])}")
    g(f"v_add_u32 {v(T[2])}, {CST}, {v(T[2])}")
    g(f"v_and_b32 {v(T[3])}, 48, {v(vLANE)}")
    g(f"v_add_u32 {v(T[3])}, {CST}, {v(T[3])}")
    for b in range(5):
        g.lg(f"ds_read_b32 {v(CN + 2 * b)}, {v(T[2])} offset:{64 * b}", tag="e")
    for b in range(5, 8):
        g.lg(f"ds_read_b128 {v(CTT + 4 * (b - 5), 4)}, {v(T[3])} offset:{64 * b}", tag="e")
    for i in range(4):
        g(f"v_mov_b32 {v(TM + i)}, 0")
    g(f"v_lshlrev_b32 {v(T[4])}, 1, {v(vT16)}")
    g(f"v_add_u32 {v(T[4])}, {KVF}, {v(T[4])}")
    g.lg(f"ds_write_b128 {v(T[4])}, {v(TM, 4)}", tag="z")
    g.lg(f"ds_write_b128 {v(T[4])}, {v(TM, 4)} offset:16", tag="z")
    g.wait(lg=["e"])
    LOG2E = "0x3fb8aa3b"
    for i in range(8):
        g(f"v_mul_f32 {v(RL4 + i)}, {LOG2E}, {v(RS4 + i)}")
    for k in range(2):
        g(f"v_mul_f32 {v(RLT + 2 * k)}, {LOG2E}, {v(RST + 2 * k)}")

    def phi(u, rs, rl, bc, dst, tm):
        m = f" {BC1}" if bc else ""
        m2 = " op_sel_hi:[1,0]" if bc else ""
        g(f"v_pk_mul_f32 {v(tm, 2)}, {v(u, 2)}, {v(rl, 2)}{m2}")
        g(f"v_pk_fma_f32 {v(tm + 2, 2)}, {v(u, 2)}, {v(rs, 2)}, {s(sEPS6, 2)}{m}")
        g(f"v_exp_f32_e64 {v(tm)}, {v(tm)} clamp")
        g(f"v_exp_f32_e64 {v(tm + 1)}, {v(tm + 1)} clamp")
        g(f"v_max_f32 {v(tm + 2)}, {s(sEPS6)}, {v(tm + 2)}")
        g(f"v_max_f32 {v(tm + 3)}, {s(sEPS6)}, {v(tm + 3)}")
        g(f"v_pk_add_f32 {v(tm, 2)}, {v(tm, 2)}, {v(tm + 2, 2)}")
        g(f"v_cvt_pk_bf16_f32 {v(dst)}, {v(tm)}, {v(tm + 1)}")

    n = 0
    for b in range(5):
        for k in range(2):
            for h in range(2):
                u = ACC + (b * 2 + k) * 4 + 2 * h
                g(f"v_pk_fma_f32 {v(u, 2)}, {v(NM4 + 4 * k + 2 * h, 2)}, {v(CN + 2 * b, 2)}, {v(u, 2)} {BC1}")
                if b <= 2:
                    phi(u, RS4 + 4 * k + 2 * h, RL4 + 4 * k + 2 * h, False, PKF + 4 * b + 2 * k + h, TM + 4 * (n % 4))
                    n += 1
                if b >= 2:
                    g(f"v_pk_mul_f32 {v(u, 2)}, {v(u, 2)}, {v(RS4 + 4 * k + 2 * h, 2)}")
                    g(f"v_cvt_pk_bf16_f32 {v(VF + 4 * (b - 2) + 2 * k + h)}, {v(u)}, {v(u + 1)}")
    g(f"v_mov_b32 {v(T[5])}, 0x3f803f80")
    for i in range(4):
        g(f"v_cndmask_b32 {v(VF + i)}, {v(VF + i)}, {v(T[5])}, {s(sM8, 2)}")
    KC = 40
    pairs = [(0, 0), (0, 1), (1, 0), (1, 1), (1, 2), (2, 0), (2, 1), (2, 2)]
    for bd, be in pairs:
        g(f"v_mfma_f32_16x16x32_bf16 {v(KC + 4 * (3 * bd + be), 4)}, {v(PKF + 4 * bd, 4)}, {v(VF + 4 * be, 4)}, 0")
    for b in range(5, 8):
        for k in range(2):
            for h in range(2):
                u = ACC + (b * 2 + k) * 4 + 2 * h
                g(f"v_pk_fma_f32 {v(u, 2)}, {v(CTT + 4 * (b - 5) + 2 * h, 2)}, {v(NMT + 2 * k, 2)}, {v(u, 2)} {BC1}")
                dst = PQ + 8 * k + (2 * (b - 5) + h)
                phi(u, RST + 2 * k, RLT + 2 * k, True, dst, TM + 4 * (n % 4))
                n += 1
        if b == 5:
            g(f"s_mul_i32 s3, {s(sWV)}, {9 * KB}")
            g(f"s_add_u32 s3, s3, {KVS}")
            g(f"v_add_u32 {v(T[6])}, s3, {v(vL16)}")
            for bd, be in pairs:
                i = 3 * bd + be
                g.lg(f"ds_write_b128 {v(T[6])}, {v(KC + 4 * i, 4)} offset:{i * 1024}", tag="kw")
            g.wait_all(vm=False)
            g("s_barrier")
            for w in range(4):
                g.lg(f"ds_read_b128 {v(40 + 4 * w, 4)}, {v(vKVS)} offset:{w * 9 * KB}", tag="kr")
        if b == 6:
            g.wait(lg=["kr"])
            for w in range(1, 4):
                for h in range(2):
                    g(f"v_pk_add_f32 {v(40 + 2 * h, 2)}, {v(40 + 2 * h, 2)}, {v(40 + 4 * w + 2 * h, 2)}")
            g(f"s_mul_i32 {s(sT0)}, {s(sLAYER)}, {KVSZ}")
            g(f"s_lshl_b32 s3, {s(sC)}, 16")
            g(f"s_add_u32 {s(sT0)}, {s(sT0)}, s3")
            g(f"s_add_u32 {s(sT0)}, {s(sT0)}, {KVP}")
            g(f"s_lshl_b32 s3, {s(sRB)}, 12")
            g(f"s_add_u32 s3, s3, {s(sT0)}")
            g.vm(f"buffer_store_dwordx4 {v(40, 4)}, {v(vT16)}, {s(SWS, 4)}, s3 offen sc1")
    for k in range(2):
        g(f"v_mov_b32 {v(PQ + 8 * k + 6)}, 0")
        g(f"v_mov_b32 {v(PQ + 8 * k + 7)}, 0")
    stamp(4, "k1 epi")
    handoff(2, 2, sCTG, st=5)
    g(f"s_add_u32 {s(sCTG)}, {s(sCTG)}, 16")
    stamp(6, "xchg go")
    for r in range(16):
        g.vm(f"buffer_load_dwordx4 {v(40 + 4 * r, 4)}, {v(vT16)}, {s(SWS, 4)}, {s(sT0)} offen sc1", tag=("P", r))
        if r < 15:
            g(f"s_add_u32 {s(sT0)}, {s(sT0)}, 4096")
    for r in range(1, 16):
        if r % 4 == 1 or r == 15:
            g.wait(vm=[("P", min(15, r + 3))])
        for h in range(2):
            g(f"v_pk_add_f32 {v(40 + 2 * h, 2)}, {v(40 + 2 * h, 2)}, {v(40 + 4 * r + 2 * h, 2)}")
    g(f"v_cvt_pk_bf16_f32 {v(44)}, {v(40)}, {v(41)}")
    g(f"v_cvt_pk_bf16_f32 {v(45)}, {v(42)}, {v(43)}")
    g.lg(f"ds_write_b64 {v(vKVD)}, {v(44, 2)}", tag="fw")
    lz = g.newlabel("noz")
    g(f"s_cmp_lg_u32 {s(sWV)}, 3")
    g(f"s_cbranch_scc1 {lz}")
    sv = begin_skip()
    g("s_mov_b64 exec, 0x3ff00")
    for i in range(1, 8):
        g(f"ds_write_b64 {v(vKVD)}, {v(44, 2)} offset:{32 * i}")
    g("s_mov_b64 exec, -1")
    end_skip(sv)
    g.label(lz)
    g.wait_all(vm=False)
    g("s_barrier")
    F = 48
    fl = [(0, 0), (1, 0), (1, 1), (2, 0), (2, 1), (3, 0), (3, 1)]
    base, off = lds_base(KVF)
    for i, (b, tt) in enumerate(fl):
        g.lg(f"ds_read_b128 {v(F + 4 * i, 4)}, {v(base)} offset:{off + (2 * b + tt) * 1024}", tag=("F", i))
    NU = 128
    order = [5, 6, 0, 1, 2, 3, 4]
    g.wait(lg=[("F", 6)])
    for i in order:
        b, tt = fl[i]
        for k in range(2):
            d = v(NU + 16 * k + 4 * b, 4)
            g(f"v_mfma_f32_16x16x32_bf16 {d}, {v(F + 4 * i, 4)}, {v(PQ + 8 * k + 4 * tt, 4)}, {'0' if tt == 0 else d}")
    g(f"s_mul_i32 {s(sT0)}, {s(sLAYER)}, {XSZ}")
    g(f"s_mul_i32 s3, {s(sRA)}, {20 * KB}")
    g(f"s_add_u32 {s(sT0)}, {s(sT0)}, s3")
    g(f"s_add_u32 {s(sT0)}, {s(sT0)}, {OF}")
    g(f"s_lshl_b32 s3, {s(sC)}, 10")
    g(f"s_add_u32 {s(sT1)}, {s(sT0)}, s3")
    g(f"s_add_u32 {s(sT2)}, {s(sT1)}, {20 * KB}")
    g(f"s_lshr_b32 s3, {s(sC)}, 2")
    g(f"s_lshl_b32 s3, s3, 10")
    g(f"s_add_u32 {s(sT0)}, {s(sT0)}, s3")
    g(f"s_and_b32 s3, {s(sC)}, 3")
    g(f"s_lshl_b32 s3, s3, 8")
    g(f"s_add_u32 {s(sT0)}, {s(sT0)}, s3")
    g(f"s_add_u32 {s(sT0)}, {s(sT0)}, {16 * KB}")
    g(f"v_and_b32 {v(T[0])}, 15, {v(vLANE)}")
    g(f"v_lshlrev_b32 {v(T[0])}, 4, {v(T[0])}")
    g(f"v_bfe_u32 {v(T[1])}, {v(vLANE)}, 4, 1")
    g(f"v_mul_u32_u24 {v(T[1])}, {20 * KB}, {v(T[1])}")
    g(f"v_add_u32 {v(T[0])}, {v(T[0])}, {v(T[1])}")
    RC = 160
    OP = 176
    for k in range(2):
        dn = NU + 16 * k + 12
        g(f"v_add_f32 {v(dn)}, {s(sEPS6)}, {v(dn)}")
        g(f"v_add_f32 {v(dn + 1)}, {s(sEPS6)}, {v(dn + 1)}")
        g(f"v_rcp_f32 {v(RC + 8 * k)}, {v(dn)}")
        g(f"v_rcp_f32 {v(RC + 8 * k + 2)}, {v(dn + 1)}")
        g(f"v_cndmask_b32 {v(RC + 8 * k + 4)}, {v(RC + 8 * k + 2)}, {v(RC + 8 * k)}, {s(sMG0, 2)}")
    for k in range(2):
        for b in range(3):
            rc = RC + 8 * k + (0, 4, 2)[b]
            for h in range(2):
                u = NU + 16 * k + 4 * b + 2 * h
                g(f"v_pk_mul_f32 {v(u, 2)}, {v(u, 2)}, {v(rc, 2)} op_sel_hi:[1,0]")
                dst = OP + 4 * k + 2 * b + h if b < 2 else OP + 8 + 2 * k + h
                g(f"v_cvt_pk_bf16_f32 {v(dst)}, {v(u)}, {v(u + 1)}")
        g.vm(f"buffer_store_dwordx4 {v(OP + 4 * k, 4)}, {v(vL16)}, {s(SWS, 4)}, {s((sT1, sT2)[k])} offen sc1")
    g(f"v_permlane16_swap_b32 {v(OP + 8)}, {v(OP + 10)}")
    g(f"v_permlane16_swap_b32 {v(OP + 9)}, {v(OP + 11)}")
    g("s_mov_b64 exec, 0xffffffff")
    g.vm(f"buffer_store_dwordx4 {v(OP + 8, 4)}, {v(T[0])}, {s(SWS, 4)}, {s(sT0)} offen sc1")
    g("s_mov_b64 exec, -1")
    stamp(7, "o done")
    g(f"s_add_u32 {s(sRTG)}, {s(sRTG)}, 16")
    handoff(1, 1, sRTG, st=8)
    stamp(9, "k2 go")


def k2():
    g(f"s_mul_i32 {s(sT4)}, {s(sLAYER)}, {XSZ}")
    g(f"s_sub_u32 s3, {s(sR16)}, {s(sWV)}")
    g(f"s_mul_i32 s3, s3, {20 * KB}")
    g(f"s_add_u32 {s(sT4)}, {s(sT4)}, s3")
    g(f"s_mul_i32 s3, {s(sWV)}, {5 * KB}")
    g(f"s_add_u32 {s(sT4)}, {s(sT4)}, s3")
    g(f"s_add_u32 {s(sT4)}, {s(sT4)}, {OF}")
    reg_gemm(5, 40, 20, 120, lambda i: a(4 * i, 4), sT4, 20, [], False)
    stamp(10, "k2 loop")
    epi_x()
    stamp(11, "k2 epi")
    g(f"s_add_u32 {s(sRTG)}, {s(sRTG)}, 16")
    cs_regs = list(range(40, 60))

    def mid():
        for op in cs_loads(cs_regs, 60, CS3, 2 * 20 * 512):
            op()
        for G in range(EARLY, NRG):
            dma_group(G)
        for op in cs_sum_ops(cs_regs, 60):
            op()
    handoff(1, 1, sRTG, mid=mid, st=12)
    stamp(13, "k3 go")


W4X = 192


def w4reg(i):
    return a(4 * i, 4) if i < 64 else v(W4X + 4 * (i - 64), 4)


def k3():
    ACC, WB, NWB, XW, NXW = 40, 152, 6, 176, 10
    set_xoff_ring()
    side = []
    f = 20
    for op in stats_ops(T):
        side.append((f, op))
        f += 1
    holder = []
    side.append((f, lambda: holder.extend(wpf_ops(70, WF4, 270 * KB, "k4", w4reg))))
    for i in range(0 if OPT.get("NOSIDE") else 64):
        side.append((f + 1 + 3 * i, lambda: holder.pop(0)()))
    ring_gemm(14, ACC, WB, NWB, XW, NXW, lambda nb: True, NRG, 28, [lambda: stats_loads(T)], side, sXOFF)
    stamp(14, "k3 loop")
    for op in holder:
        op()
    CSR = [152, 160, 168, 176, 184, 216, 224]
    NMT, R2 = 232, 236
    tbl_addrs(None, T[1])
    g(f"v_and_b32 {v(T[3])}, 48, {v(vLANE)}")
    g(f"v_add_u32 {v(T[3])}, {CST}, {v(T[3])}")
    for k in range(2):
        g.lg(f"ds_read_b32 {v(NMT + 2 * k)}, {v(T[1])} offset:{64 * k}", tag="e")
        g.lg(f"ds_read_b32 {v(R2 + 2 * k)}, {v(T[1])} offset:{128 + 64 * k}", tag="e")
    for p in range(7):
        g.lg(f"ds_read_b128 {v(CSR[p], 4)}, {v(T[3])} offset:{64 * p}", tag=("c", p))
        g.lg(f"ds_read_b128 {v(CSR[p] + 4, 4)}, {v(T[3])} offset:{512 + 64 * p}", tag=("c", p))
    g(f"s_mul_i32 {s(sT0)}, {s(sLAYER)}, {HSZ}")
    g(f"s_mul_i32 s3, {s(sRA)}, {54 * KB}")
    g(f"s_add_u32 {s(sT0)}, {s(sT0)}, s3")
    g(f"s_add_u32 {s(sT0)}, {s(sT0)}, {HF}")
    g(f"s_mul_i32 s3, {s(sC)}, {3 * KB}")
    g(f"s_add_u32 {s(sT1)}, {s(sT0)}, s3")
    g(f"s_add_u32 {s(sT2)}, {s(sT1)}, {54 * KB}")
    g(f"s_lshl_b32 s3, {s(sCT)}, 10")
    g(f"s_add_u32 {s(sT0)}, {s(sT0)}, s3")
    g(f"s_lshl_b32 s3, {s(sRH)}, 9")
    g(f"s_add_u32 {s(sT0)}, {s(sT0)}, s3")
    g(f"s_add_u32 {s(sT0)}, {s(sT0)}, {46 * KB}")
    g(f"v_and_b32 {v(T[4])}, 15, {v(vLANE)}")
    g(f"v_lshrrev_b32 {v(T[5])}, 5, {v(vLANE)}")
    g(f"v_lshl_add_u32 {v(T[4])}, {v(T[5])}, 4, {v(T[4])}")
    g(f"v_lshlrev_b32 {v(T[4])}, 4, {v(T[4])}")
    g(f"v_bfe_u32 {v(T[5])}, {v(vLANE)}, 4, 1")
    g(f"v_mul_u32_u24 {v(T[5])}, {54 * KB}, {v(T[5])}")
    g(f"v_add_u32 {v(T[4])}, {v(T[4])}, {v(T[5])}")
    g.wait(lg=["e"])
    for k in range(2):
        g(f"v_mul_f32 {v(R2 + 2 * k)}, {v(R2 + 2 * k)}, {v(R2 + 2 * k)}")
    lab = None
    for p in (0, 1, 6, 2, 3, 4, 5):
        if p == 2:
            lab = g.newlabel("c15")
            g.wait(lg=[("c", 6)])
            g(f"s_cmp_eq_u32 {s(sC)}, 15")
            g(f"s_cbranch_scc1 {lab}")
            sv = begin_skip()
        g.wait(lg=[("c", p)])
        for k in range(2):
            G_ = ACC + (4 * p + k) * 4
            U_ = ACC + (4 * p + 2 + k) * 4
            if p == 6:
                dst = ACC + (4 * 6) * 4 + 2 * k
            else:
                dst = ACC + (4 * (p & ~1) + k) * 4 + 2 * (p & 1)
            tm = T[6] if k == 0 else T[8]
            for h in range(2):
                g(f"v_pk_fma_f32 {v(G_ + 2 * h, 2)}, {v(CSR[p] + 2 * h, 2)}, {v(NMT + 2 * k, 2)}, {v(G_ + 2 * h, 2)} {BC1}")
                g(f"v_pk_fma_f32 {v(U_ + 2 * h, 2)}, {v(CSR[p] + 4 + 2 * h, 2)}, {v(NMT + 2 * k, 2)}, {v(U_ + 2 * h, 2)} {BC1}")
            for h in range(2):
                g(f"v_pk_mul_f32 {v(U_ + 2 * h, 2)}, {v(U_ + 2 * h, 2)}, {v(R2 + 2 * k, 2)} op_sel_hi:[1,0]")
            for h in range(2):
                g(f"v_pk_mul_f32 {v(U_ + 2 * h, 2)}, {v(U_ + 2 * h, 2)}, {v(G_ + 2 * h, 2)}")
            if p == 6 and k == 0:
                pass
            for h in range(2):
                g(f"v_cvt_pk_bf16_f32 {v(dst + h)}, {v(U_ + 2 * h)}, {v(U_ + 2 * h + 1)}")
            if p < 6 and p & 1:
                g.vm(f"buffer_store_dwordx4 {v(ACC + (4 * (p - 1) + k) * 4, 4)}, {v(vL16)}, {s(SWS, 4)}, "
                     f"{s((sT1, sT2)[k])} offen offset:{(p >> 1) * 1024} sc1", maybe=(p > 1))
        if p == 6:
            d = ACC + 24 * 4
            g(f"v_permlane16_swap_b32 {v(d)}, {v(d + 2)}")
            g(f"v_permlane16_swap_b32 {v(d + 1)}, {v(d + 3)}")
            g.vm(f"buffer_store_dwordx4 {v(d, 4)}, {v(T[4])}, {s(SWS, 4)}, {s(sT0)} offen sc1")
    end_skip(sv)
    g.label(lab)
    stamp(15, "k3 epi")
    g(f"s_add_u32 {s(sRTG)}, {s(sRTG)}, 16")
    handoff(1, 1, sRTG, st=16)
    stamp(17, "k4 go")


def k4():
    g(f"s_mul_i32 {s(sT4)}, {s(sLAYER)}, {HSZ}")
    g(f"s_sub_u32 s3, {s(sR16)}, {s(sWV)}")
    g(f"s_mul_i32 s3, s3, {54 * KB}")
    g(f"s_add_u32 {s(sT4)}, {s(sT4)}, s3")
    g(f"s_mul_i32 s3, {s(sWV)}, 14")
    g(f"s_cmp_eq_u32 {s(sWV)}, 3")
    g(f"s_cselect_b32 s3, 41, s3")
    g(f"s_lshl_b32 s3, s3, 10")
    g(f"s_add_u32 {s(sT4)}, {s(sT4)}, s3")
    g(f"s_add_u32 {s(sT4)}, {s(sT4)}, {HF}")
    g(f"s_cmp_ge_u32 {s(sWV)}, 2")
    g(f"s_cselect_b32 {s(sX14)}, 12, 13")
    g(f"s_lshl_b32 {s(sX14)}, {s(sX14)}, 10")
    g(f"s_cmp_eq_u32 {s(sLAYER)}, 0")
    g(f"s_cselect_b32 {s(SPF + 2)}, {WS_END}, 0")
    set_goff(WF1, 160 * KB, 0)
    side = [lambda G=G: dma_group(G, srd=SPF) for G in range(EARLY)]
    reg_gemm(14, 40, 28, 152, w4reg, sT4, 54, side, True)
    stamp(18, "k4 loop")
    g(f"s_cmp_eq_u32 {s(sLAYER)}, 1")
    g("s_cbranch_scc1 L_final")
    g(f"s_mov_b32 {s(sLAYER)}, 1")
    g(f"s_add_u32 {s(sRTG)}, {s(sRTG)}, 16")
    g.fence()
    g.label("L_epi4_x")
    epi_x()
    stamp(19, "k4 epi")

    def pre_arrive():
        lp, lo = g.newlabel("ipoll"), g.newlabel("ipollout")
        set_aux(P_DBG, 256)
        g(f"v_mov_b32 {v(T[8])}, 0")
        g(f"s_mov_b32 {s(sITER)}, 0")
        g.label(lp)
        g(f"buffer_load_dword {v(T[9])}, {v(T[8])}, {s(SAUX, 4)}, 0 offen sc1")
        g(f"s_add_u32 {s(sITER)}, {s(sITER)}, 1")
        g(f"s_cmp_gt_u32 {s(sITER)}, 0x40000")
        g(f"s_cbranch_scc1 {lo}")
        g("s_waitcnt vmcnt(0)")
        g(f"v_cmp_eq_u32 vcc, 0, {v(T[9])}")
        g("s_nop 0")
        g(f"s_cbranch_vccnz {lp}")
        g.label(lo)
        g("s_waitcnt vmcnt(0)")

    def pre_arrive_guard():
        lab = g.newlabel("noipoll")
        g(f"s_cmp_lg_u32 {s(sLAYER)}, 0")
        g(f"s_cbranch_scc1 {lab}")
        pre_arrive()
        g.label(lab)

    def mid():
        lab = g.newlabel("nomid")
        g(f"s_cmp_eq_u32 {s(sLAYER)}, 0")
        g(f"s_cbranch_scc1 {lab}")
        sv = begin_skip()
        q = list(g.vmq)
        for G in range(EARLY, NRG):
            dma_group(G)
        g.vmq = q
        end_skip(sv)
        g.label(lab)
    handoff((sAM,), (sWM,), sRTG, mid=mid, pre_arrive=pre_arrive_guard, st=20)
    stamp(21, "polled")
    g(f"s_mov_b64 {s(sAM, 2)}, 1")
    g(f"s_mov_b64 {s(sWM, 2)}, 1")
    if STAMPS:
        g(f"s_add_u32 {s(sSIDX)}, {s(sSIDX)}, 20")
    g(f"s_cmp_lg_u32 {s(sLAYER)}, 0")
    g("s_cbranch_scc1 L_k1")
    set_goff(WF1, 160 * KB, 0)
    for G in range(NRG):
        dma_group(G)
    g.fence()
    g("s_branch L_k1")
    g.label("L_final")
    g.nop(2)
    epi_pack()
    set_aux(P_OUT, 2048 * 1280)
    g(f"v_and_b32 {v(T[0])}, 15, {v(vLANE)}")
    g(f"v_mul_u32_u24 {v(T[0])}, 1280, {v(T[0])}")
    g(f"v_bfe_u32 {v(T[1])}, {v(vLANE)}, 4, 1")
    g(f"v_lshl_add_u32 {v(T[0])}, {v(T[1])}, 5, {v(T[0])}")
    g(f"v_lshrrev_b32 {v(T[1])}, 5, {v(vLANE)}")
    g(f"v_lshl_add_u32 {v(T[0])}, {v(T[1])}, 4, {v(T[0])}")
    g(f"s_mul_i32 {s(sT0)}, {s(sR16)}, {16 * 1280}")
    g(f"s_mul_i32 {s(sT1)}, {s(sCT)}, 160")
    g(f"s_add_u32 {s(sT0)}, {s(sT0)}, {s(sT1)}")
    for i in range(3):
        g(f"v_permlane16_swap_b32 {v(PK + 4 * i)}, {v(PK + 4 * i + 2)}")
        g(f"v_permlane16_swap_b32 {v(PK + 4 * i + 1)}, {v(PK + 4 * i + 3)}")
    g(f"buffer_store_dwordx4 {v(PK, 4)}, {v(T[0])}, {s(SAUX, 4)}, {s(sT0)} offen")
    g(f"buffer_store_dwordx4 {v(PK + 4, 4)}, {v(T[0])}, {s(SAUX, 4)}, {s(sT0)} offen offset:64")
    g("s_mov_b32 exec_lo, 0xffff")
    g("s_mov_b32 exec_hi, 0xffff")
    g(f"buffer_store_dwordx4 {v(PK + 8, 4)}, {v(T[0])}, {s(SAUX, 4)}, {s(sT0)} offen offset:128")
    g("s_mov_b64 exec, -1")
    if STAMPS:
        g("s_waitcnt vmcnt(0)")
        stamp(19, "k4 epi")
        lab = g.newlabel("nost")
        g(f"s_cmp_lg_u32 {s(sWV)}, 0")
        g(f"s_cbranch_scc1 {lab}")
        g(f"s_lshl_b32 s3, s2, 8")
        g(f"s_add_u32 s3, s3, {STAMP}")
        g(f"v_lshlrev_b32 {v(T[0])}, 2, {v(vLANE)}")
        g(f"buffer_store_dword {v(vSTAMP)}, {v(T[0])}, {s(SWS, 4)}, s3 offen")
        g.label(lab)
    g.label("L_end")
    g("s_endpgm")


def build():
    prologue()
    prep()
    g.vmq = [(("G", G), False) for G in range(NRG) for _ in range(2)]
    g.lgq = []
    k1()
    k2()
    k3()
    k4()
    head = open("cdna_kernels/" + NAME + ".s.ref").read().splitlines()
    hdr = [l for l in head[:12] if l.startswith(";") and "@launch" not in l]
    out = "\n".join(hdr) + f"\n; @launch grid=(256,1,1) block=(256,1,1) lds={LDS_BYTES}\n"
    out += '.amdgcn_target "amdgcn-amd-amdhsa--gfx950"\n.text\n'
    out += f".globl {NAME}_kernel\n.p2align 8\n.type {NAME}_kernel,@function\n{NAME}_kernel:\n"
    out += g.text()
    out += f'.section .rodata,"a"\n.p2align 6\n.amdhsa_kernel {NAME}_kernel\n'
    out += f"  .amdhsa_next_free_vgpr 512\n  .amdhsa_next_free_sgpr {NSGPR}\n  .amdhsa_accum_offset 256\n"
    out += "  .amdhsa_group_segment_fixed_size 0\n  .amdhsa_kernarg_size 80\n  .amdhsa_user_sgpr_count 2\n"
    out += "  .amdhsa_user_sgpr_kernarg_segment_ptr 1\n  .amdhsa_system_sgpr_workgroup_id_x 1\n"
    out += "  .amdhsa_float_denorm_mode_32 3\n"
    out += ".end_amdhsa_kernel\n"
    return out


if __name__ == "__main__":
    path = [x for x in sys.argv[1:] if not x.startswith("-")]
    path = path[0] if path else "cdna_kernels/" + NAME + ".s"
    text = build()
    open(path, "w").write(text)
    import json
    LAYOUT["STAMP_NAMES"] = STAMP_NAMES
    json.dump(LAYOUT, open("layout.json", "w"))
    print(f"wrote {path}: {g.n_instr} instructions, ws bytes {WS_END}")
```

```python
import sys
from asmdsl import Asm, v, a, s

NAME = "interleave_layers__linear_attn_block__glu_gated_bilinear__prompt"
STAMPS = "--stamps" in sys.argv
OPT = {}
for arg in sys.argv[1:]:
    if arg.startswith("-D"):
        k, _, val = arg[2:].partition("=")
        OPT[k] = int(val) if val else 1

KB = 1024
CNT = 0
STAMP = 16 * KB
CS1 = 128 * KB
CS3 = CS1 + 16 * 20 * 512
ST = CS3 + 32 * 20 * 512
STSZ = 128 * KB
KVP = ST + 4 * STSZ
KVSZ = 1024 * KB
WF1 = KVP + 2 * KVSZ
WF2 = WF1 + 16 * 160 * KB
WF3 = WF2 + 8 * 100 * KB
WF4 = WF3 + 16 * 280 * KB
XF = WF4 + 8 * 270 * KB + 8 * KB
XSZ = 128 * 20 * KB
OF = XF + 4 * XSZ
HF = OF + 2 * XSZ
HSZ = 128 * 54 * KB
WS_END = HF + 2 * HSZ
LAYOUT = dict(CNT=CNT, STAMP=STAMP, CS1=CS1, CS3=CS3, ST=ST, STSZ=STSZ, KVP=KVP, KVSZ=KVSZ, WF1=WF1, WF2=WF2,
              WF3=WF3, WF4=WF4, XF=XF, XSZ=XSZ, OF=OF, HF=HF, HSZ=HSZ, WS_END=WS_END)

RING = 144 * KB
NRG = RING // (8 * KB)
EARLY = 12
RED = 96 * KB
KVS = 96 * KB
KVF = KVS + 36 * KB
TBL = 156 * KB
CST = TBL + 1024
LDS_BYTES = 160 * KB

SWS, SAUX, SPF = 4, 8, 12
sRB, sC, sWV, sCT = 16, 17, 18, 19
P_X0, P_WQKV, P_WO, P_BX, P_WG, P_WU, P_WD, P_OUT, P_DBG, P_WS = 20, 22, 24, 26, 28, 30, 32, 34, 36, 38
sRH, sLAYER, sWLDS, sGOFF, sXI, sRTG, sCTG, sITER = 40, 41, 42, 43, 44, 45, 46, 47
sAM, sWM = 48, 50
sT0, sT1, sT2, sT3, sT4, sT5 = 52, 53, 54, 55, 56, 57
sXOFF = 58
sPFOFF = 62
sEPS6 = 64
sM8 = 66
sMG0 = 68
sRED = 70
sR16 = 71
sRA = 72
sRT = 74
sSIDX = 76
sJ = 78
sX14 = 94
NSGPR = 96

vLANE, vL16, vDMA, vLD1, vLD2, vCNT, vKVS, vKVD, vSTAMP, vT16 = range(10)
T = list(range(10, 20))
XR = 20

g = Asm()


STAMP_NAMES = {}


def stamp(i, name=None):
    if not STAMPS:
        return
    STAMP_NAMES[i] = name
    g(f"{'s_memtime' if OPT.get('CYC') else 's_memrealtime'} {s(sRT, 2)}")
    g.wait_all(vm=False)
    g(f"s_add_u32 m0, {s(sSIDX)}, {i}")
    g("s_nop 0")
    g(f"v_writelane_b32 {v(vSTAMP)}, {s(sRT)}, m0")


def lds_base(addr):
    return (vL16, vLD1, vLD2)[addr >> 16], addr & 0xFFFF


def begin_skip():
    return (g.slot, dict(g.valu_w), dict(g.mfma_w), dict(g.mfma_c), dict(g.store_r), dict(g.trans_w), dict(g.valu_sw))


def end_skip(sv):
    pre = sv[0]
    for d in (g.valu_w, g.mfma_c, g.store_r, g.trans_w, g.valu_sw):
        for r in d:
            if d[r] >= pre:
                d[r] = pre - 1
    for r in g.mfma_w:
        if g.mfma_w[r][0] >= pre:
            g.mfma_w[r] = (pre - 1, g.mfma_w[r][1])
    for cur, old in ((g.valu_w, sv[1]), (g.mfma_w, sv[2]), (g.mfma_c, sv[3]), (g.store_r, sv[4]), (g.trans_w, sv[5]),
                     (g.valu_sw, sv[6])):
        for r in old:
            if r not in cur:
                cur[r] = old[r]
    if g.m0_w >= pre:
        g.m0_w = pre - 1
    g.slot = pre


def dma_group(G, srd=SWS, maybe=False):
    g(f"s_add_u32 m0, {s(sWLDS)}, {(G % NRG) * 8 * KB}")
    g.vm(f"buffer_load_dwordx4 {v(vDMA)}, {s(srd, 4)}, {s(sGOFF)} offen sc1 lds", tag=("G", G), maybe=maybe)
    g.vm(f"buffer_load_dwordx4 {v(vDMA)}, {s(srd, 4)}, {s(sGOFF)} offen offset:1024 sc1 lds", tag=("G", G), maybe=maybe)
    g(f"s_add_u32 {s(sGOFF)}, {s(sGOFF)}, {8 * KB}")


def handoff(arrive_mask, wait_mask, target, mid=None, pre_arrive=None, st=None):
    def mask(m):
        return s(m[0], 2) if isinstance(m, tuple) else str(m)
    g.wait_all()
    g("s_barrier")
    if st is not None:
        stamp(st, "stores done")
    l1, l2, lp, lo = g.newlabel("noarr"), g.newlabel("nopoll"), g.newlabel("poll"), g.newlabel("pollout")
    g(f"s_cmp_lg_u32 {s(sWV)}, 0")
    g(f"s_cbranch_scc1 {l1}")
    sv = begin_skip()
    if pre_arrive:
        pre_arrive()
    g(f"v_mov_b32 {v(T[9])}, 1")
    g(f"s_mov_b64 exec, {mask(arrive_mask)}")
    g(f"buffer_atomic_add {v(T[9])}, {v(vCNT)}, {s(SWS, 4)}, 0 offen sc1")
    g("s_mov_b64 exec, -1")
    end_skip(sv)
    g.label(l1)
    if mid:
        mid()
    g(f"s_cmp_lg_u32 {s(sWV)}, 0")
    g(f"s_cbranch_scc1 {l2}")
    sv = begin_skip()
    g(f"s_mov_b64 exec, {mask(wait_mask)}")
    g(f"s_mov_b32 {s(sITER)}, 0")
    g.label(lp)
    g(f"buffer_load_dword {v(T[9])}, {v(vCNT)}, {s(SWS, 4)}, 0 offen sc1")
    g(f"s_add_u32 {s(sITER)}, {s(sITER)}, 1")
    g(f"s_cmp_gt_u32 {s(sITER)}, 0x40000")
    g(f"s_cbranch_scc1 {lo}")
    g("s_waitcnt vmcnt(0)")
    g(f"v_cmp_gt_u32 vcc, {s(target)}, {v(T[9])}")
    g("s_nop 0")
    g(f"s_cbranch_vccnz {lp}")
    g.label(lo)
    g("s_mov_b64 exec, -1")
    end_skip(sv)
    g.label(l2)
    g("s_barrier")


def reduce_g(regs, tmps):
    for sw in ("v_permlane16_swap_b32", "v_permlane32_swap_b32"):
        for r, t in zip(regs, tmps):
            g(f"v_mov_b32 {v(t)}, {v(r)}")
        for r, t in zip(regs, tmps):
            g(f"{sw} {v(r)}, {v(t)}")
        for r, t in zip(regs, tmps):
            g(f"v_add_f32 {v(r)}, {v(r)}, {v(t)}")


def prologue():
    g(f"s_cmp_ge_u32 s2, 256")
    g("s_cbranch_scc1 L_end")
    g(f"s_load_dwordx16 {s(20, 16)}, s[0:1], 0")
    g(f"s_load_dwordx4 {s(36, 4)}, s[0:1], 64")
    if OPT.get("MAP", 0) == 0:
        g(f"s_and_b32 {s(sRB)}, s2, 7")
        g(f"s_lshl_b32 {s(sRB)}, {s(sRB)}, 1")
        g(f"s_bfe_u32 s3, s2, 0x10003")
        g(f"s_add_u32 {s(sRB)}, {s(sRB)}, s3")
        g(f"s_lshr_b32 {s(sC)}, s2, 4")
    elif OPT["MAP"] == 1:
        g(f"s_bfe_u32 {s(sRB)}, s2, 0x20001")
        g(f"s_lshl_b32 {s(sRB)}, {s(sRB)}, 2")
        g(f"s_bfe_u32 s3, s2, 0x20003")
        g(f"s_add_u32 {s(sRB)}, {s(sRB)}, s3")
        g(f"s_and_b32 {s(sC)}, s2, 1")
        g(f"s_lshl_b32 {s(sC)}, {s(sC)}, 3")
        g(f"s_lshr_b32 s3, s2, 5")
        g(f"s_add_u32 {s(sC)}, {s(sC)}, s3")
    else:
        g(f"s_bfe_u32 {s(sRB)}, s2, 0x10002")
        g(f"s_lshl_b32 {s(sRB)}, {s(sRB)}, 3")
        g(f"s_bfe_u32 s3, s2, 0x30003")
        g(f"s_add_u32 {s(sRB)}, {s(sRB)}, s3")
        g(f"s_and_b32 {s(sC)}, s2, 3")
        g(f"s_lshl_b32 {s(sC)}, {s(sC)}, 2")
        g(f"s_lshr_b32 s3, s2, 6")
        g(f"s_add_u32 {s(sC)}, {s(sC)}, s3")
    g(f"s_lshr_b32 {s(sCT)}, {s(sC)}, 1")
    g(f"s_and_b32 {s(sRH)}, {s(sC)}, 1")
    g(f"v_lshrrev_b32 {v(T[0])}, 6, v0")
    g(f"v_lshlrev_b32 {v(vT16)}, 4, v0")
    g(f"v_readfirstlane_b32 {s(sWV)}, {v(T[0])}")
    g(f"v_mov_b32 {v(T[1])}, v0")
    g(f"v_and_b32 {v(vLANE)}, 63, v0")
    g(f"v_lshlrev_b32 {v(vL16)}, 4, {v(vLANE)}")
    g(f"s_lshl_b32 {s(sWLDS)}, {s(sWV)}, 11")
    g(f"v_add_u32 {v(vDMA)}, {s(sWLDS)}, {v(vL16)}")
    g(f"v_add_u32 {v(vLD1)}, 0x10000, {v(vL16)}")
    g(f"v_add_u32 {v(vLD2)}, 0x20000, {v(vL16)}")
    g(f"v_mov_b32 {v(vSTAMP)}, 0")
    g(f"s_mov_b32 {s(sSIDX)}, 0")
    g(f"s_mov_b32 {s(sLAYER)}, 0")
    g(f"s_mov_b32 {s(sXI)}, 0")
    g(f"s_mov_b32 {s(sRTG)}, 16")
    g(f"s_mov_b32 {s(sCTG)}, 32")
    g(f"s_mov_b64 {s(sAM, 2)}, 3")
    g(f"s_mov_b64 {s(sWM, 2)}, 7")
    g(f"s_mov_b32 {s(sEPS6)}, 0x358637bd")
    g(f"s_mov_b32 {s(sEPS6 + 1)}, 0x358637bd")
    g(f"s_mov_b32 {s(sM8)}, 0x00ff00ff")
    g(f"s_mov_b32 {s(sM8 + 1)}, 0x00ff00ff")
    g(f"s_mov_b64 {s(sMG0, 2)}, 0xffff")
    g(f"s_lshl_b32 {s(sRA)}, {s(sRB)}, 3")
    g(f"s_lshl_b32 s3, {s(sRH)}, 2")
    g(f"s_add_u32 {s(sR16)}, {s(sRA)}, s3")
    g(f"s_add_u32 {s(sR16)}, {s(sR16)}, {s(sWV)}")
    g(f"s_lshl_b32 s3, {s(sWV)}, 1")
    g(f"s_add_u32 {s(sRA)}, {s(sRA)}, s3")
    g(f"s_lshl_b32 s3, {s(sRB)}, 8")
    g(f"v_mov_b32 {v(vCNT)}, s3")
    g(f"s_lshl_b32 s3, {s(sC)}, 8")
    g(f"s_add_u32 s3, s3, 4096")
    g(f"v_writelane_b32 {v(vCNT)}, s3, 1")
    g(f"s_xor_b32 s3, s3, 256")
    g(f"v_writelane_b32 {v(vCNT)}, s3, 2")
    t, head, rem, e, dq, es, ed, x0, x1 = T[1], T[2], T[3], T[4], T[5], T[6], T[7], T[8], T[9]
    g(f"v_cmp_le_u32 vcc, 100, {v(t)}")
    g(f"v_cndmask_b32 {v(head)}, 0, 1, vcc")
    g(f"v_mul_u32_u24 {v(x0)}, 100, {v(head)}")
    g(f"v_sub_u32 {v(rem)}, {v(t)}, {v(x0)}")
    g(f"v_mul_u32_u24 {v(e)}, 205, {v(rem)}")
    g(f"v_lshrrev_b32 {v(e)}, 10, {v(e)}")
    g(f"v_mul_u32_u24 {v(x0)}, 5, {v(e)}")
    g(f"v_sub_u32 {v(dq)}, {v(rem)}, {v(x0)}")
    g(f"v_mad_u32_u24 {v(e)}, {v(head)}, 20, {v(e)}")
    g(f"v_mad_u32_u24 {v(dq)}, {v(head)}, 5, {v(dq)}")
    g(f"v_add_u32 {v(es)}, 8, {v(e)}")
    g(f"v_mov_b32 {v(ed)}, {v(e)}")
    g(f"v_subrev_u32 {v(x0)}, 200, {v(t)}")
    g(f"v_cmp_le_u32 vcc, 205, {v(t)}")
    g(f"v_cndmask_b32 {v(x1)}, 48, 49, vcc")
    g(f"v_cmp_le_u32 vcc, 200, {v(t)}")
    g(f"v_cndmask_b32 {v(dq)}, {v(dq)}, {v(x0)}, vcc")
    g(f"v_cndmask_b32 {v(es)}, {v(es)}, 0, vcc")
    g(f"v_cndmask_b32 {v(ed)}, {v(ed)}, {v(x1)}, vcc")
    g(f"v_cmp_le_u32 vcc, 210, {v(t)}")
    g(f"v_cndmask_b32 {v(dq)}, {v(dq)}, 0, vcc")
    g(f"v_cndmask_b32 {v(ed)}, {v(ed)}, 64, vcc")
    g(f"v_lshrrev_b32 {v(x0)}, 2, {v(dq)}")
    g(f"v_lshrrev_b32 {v(x1)}, 4, {v(es)}")
    g(f"v_mad_u32_u24 {v(x0)}, {v(x0)}, 3, {v(x1)}")
    g(f"v_lshlrev_b32 {v(vKVS)}, 10, {v(x0)}")
    g(f"v_and_b32 {v(x0)}, 3, {v(dq)}")
    g(f"v_lshlrev_b32 {v(x0)}, 8, {v(x0)}")
    g(f"v_and_b32 {v(x1)}, 15, {v(es)}")
    g(f"v_lshl_add_u32 {v(x1)}, {v(x1)}, 4, {v(x0)}")
    g(f"v_add_u32 {v(vKVS)}, {v(vKVS)}, {v(x1)}")
    g(f"v_add_u32 {v(vKVS)}, {KVS}, {v(vKVS)}")
    g(f"v_lshrrev_b32 {v(x1)}, 4, {v(ed)}")
    g(f"v_lshlrev_b32 {v(vKVD)}, 11, {v(x1)}")
    g(f"v_lshrrev_b32 {v(x1)}, 3, {v(dq)}")
    g(f"v_lshl_add_u32 {v(vKVD)}, {v(x1)}, 10, {v(vKVD)}")
    g(f"v_add_u32 {v(vKVD)}, {v(vKVD)}, {v(x0)}")
    g(f"v_and_b32 {v(x1)}, 15, {v(ed)}")
    g(f"v_lshl_add_u32 {v(vKVD)}, {v(x1)}, 4, {v(vKVD)}")
    g(f"v_bfe_u32 {v(x1)}, {v(dq)}, 2, 1")
    g(f"v_lshl_add_u32 {v(vKVD)}, {v(x1)}, 3, {v(vKVD)}")
    g(f"v_add_u32 {v(vKVD)}, {KVF}, {v(vKVD)}")
    g("s_waitcnt lgkmcnt(0)")
    for srd in (SWS, SPF):
        g(f"s_mov_b32 {s(srd)}, {s(P_WS)}")
        g(f"s_and_b32 {s(srd + 1)}, {s(P_WS + 1)}, 0xffff")
        g(f"s_mov_b32 {s(srd + 2)}, {WS_END}")
        g(f"s_mov_b32 {s(srd + 3)}, 0x20000")
    stamp(0, "start")


def set_aux(ptr, nbytes):
    g(f"s_mov_b32 {s(SAUX)}, {s(ptr)}")
    g(f"s_and_b32 {s(SAUX + 1)}, {s(ptr + 1)}, 0xffff")
    g(f"s_mov_b32 {s(SAUX + 2)}, {nbytes}")
    g(f"s_mov_b32 {s(SAUX + 3)}, 0x20000")


def prep():
    l0 = g.newlabel("noinit")
    g(f"s_or_b32 s3, s2, {s(sWV)}")
    g(f"s_cmp_lg_u32 s3, 0")
    g(f"s_cbranch_scc1 {l0}")
    sv = begin_skip()
    set_aux(P_DBG, 256)
    g(f"v_lshlrev_b32 {v(T[0])}, 8, {v(vLANE)}")
    g(f"v_mov_b32 {v(T[1])}, 0")
    g(f"s_mov_b64 exec, 0xffffffff")
    g(f"buffer_store_dword {v(T[1])}, {v(T[0])}, {s(SWS, 4)}, 0 offen sc1")
    g("s_waitcnt vmcnt(0)")
    g(f"v_mov_b32 {v(T[2])}, 1")
    g(f"s_mov_b64 exec, 1")
    g(f"buffer_store_dword {v(T[2])}, {v(T[1])}, {s(SAUX, 4)}, 0 offen sc1")
    g("s_mov_b64 exec, -1")
    end_skip(sv)
    g.label(l0)

    set_aux(P_X0, 2048 * 1280)
    XL = 40
    g(f"v_and_b32 {v(T[0])}, 15, {v(vLANE)}")
    g(f"v_mul_u32_u24 {v(T[0])}, 1280, {v(T[0])}")
    g(f"v_lshrrev_b32 {v(T[1])}, 4, {v(vLANE)}")
    g(f"v_lshl_add_u32 {v(T[0])}, {v(T[1])}, 3, {v(T[0])}")
    g(f"s_mul_i32 {s(sT0)}, {s(sR16)}, {16 * 1280}")
    g(f"s_mul_i32 {s(sT1)}, {s(sCT)}, 160")
    g(f"s_add_u32 {s(sT0)}, {s(sT0)}, {s(sT1)}")
    for b in range(5):
        g.vm(f"buffer_load_dwordx2 {v(XL + 2 * b, 2)}, {v(T[0])}, {s(SAUX, 4)}, {s(sT0)} offen offset:{32 * b}", tag="x0")

    jTy0, jT0, jTy1, jT1, jSlot, jTy, jT, jRS, jB, jA, jBb, jC = [sJ + i for i in range(12)]
    rD, rS, rN, rC = sT0, sT1, sT2, sT3
    R0 = [sXOFF, sXOFF + 1, sXOFF + 2, sXOFF + 3]
    R1 = [sJ + 12, sJ + 13, sJ + 14, sJ + 15]
    lw1, lw2, lw3, ldone = [g.newlabel(x) for x in ("w1", "w2", "w3", "jobs")]
    g(f"s_mov_b32 {s(jTy1)}, 0")
    g(f"s_mov_b32 {s(jT1)}, 0")
    g(f"s_cmp_eq_u32 {s(sWV)}, 1")
    g(f"s_cbranch_scc1 {lw1}")
    g(f"s_cmp_eq_u32 {s(sWV)}, 2")
    g(f"s_cbranch_scc1 {lw2}")
    g(f"s_cmp_eq_u32 {s(sWV)}, 3")
    g(f"s_cbranch_scc1 {lw3}")
    g(f"s_mov_b32 {s(jTy0)}, 1")
    g(f"s_mov_b32 {s(jT0)}, {s(sRB)}")
    g(f"s_branch {ldone}")
    g.label(lw1)
    g(f"s_mov_b32 {s(jTy0)}, 1")
    g(f"s_add_u32 {s(jT0)}, {s(sRB)}, 16")
    g(f"s_cmp_lt_u32 {s(sRB)}, 4")
    g(f"s_cbranch_scc1 {ldone}")
    g(f"s_mov_b32 {s(jTy0)}, 3")
    g(f"s_mov_b32 {s(jTy1)}, 4")
    g(f"s_add_u32 {s(jT0)}, {s(sRB)}, 12")
    g(f"s_mov_b32 {s(jT1)}, {s(jT0)}")
    g(f"s_cmp_lt_u32 {s(sRB)}, 8")
    g(f"s_cbranch_scc1 {ldone}")
    g(f"s_mov_b32 {s(jTy0)}, 2")
    g(f"s_mov_b32 {s(jTy1)}, 0")
    g(f"s_lshl_b32 {s(jT0)}, {s(sRH)}, 3")
    g(f"s_add_u32 {s(jT0)}, {s(jT0)}, {s(sRB)}")
    g(f"s_sub_u32 {s(jT0)}, {s(jT0)}, 8")
    g(f"s_branch {ldone}")
    g.label(lw2)
    g(f"s_mov_b32 {s(jTy0)}, 3")
    g(f"s_mov_b32 {s(jTy1)}, 4")
    g(f"s_mov_b32 {s(jT0)}, {s(sRB)}")
    g(f"s_mov_b32 {s(jT1)}, {s(sRB)}")
    g(f"s_branch {ldone}")
    g.label(lw3)
    g(f"s_mov_b32 {s(jTy0)}, 5")
    g(f"s_lshl_b32 {s(jT0)}, {s(sRH)}, 4")
    g(f"s_add_u32 {s(jT0)}, {s(jT0)}, {s(sRB)}")
    g(f"s_mov_b32 {s(jTy1)}, 5")
    g(f"s_add_u32 {s(jT1)}, {s(jT0)}, 32")
    g(f"s_cmp_lt_u32 {s(jT0)}, 22")
    g(f"s_cbranch_scc1 {ldone}")
    g(f"s_mov_b32 {s(jTy1)}, 2")
    g(f"s_sub_u32 {s(jT1)}, {s(jT0)}, 6")
    g(f"s_cmp_lt_u32 {s(jT0)}, 26")
    g(f"s_cbranch_scc1 {ldone}")
    g(f"s_mov_b32 {s(jTy1)}, 0")
    g.label(ldone)

    cc, r4, vo, x0, x1 = T[2], T[3], T[4], T[5], T[6]
    g(f"v_and_b32 {v(cc)}, 15, {v(vLANE)}")
    g(f"v_lshrrev_b32 {v(r4)}, 4, {v(vLANE)}")
    g(f"s_mov_b32 {s(jSlot)}, 0")
    g(f"s_mov_b32 {s(jTy)}, {s(jTy0)}")
    g(f"s_mov_b32 {s(jT)}, {s(jT0)}")
    lloop, lt1, lt2, lt3, lt5, lkx, lissue, lnext, lsh = [g.newlabel(x) for x in
                                                         ("jloop", "t1", "t2", "t3", "t5", "kx", "issue", "jnext", "sh")]
    g.fence()
    g.label(lloop)
    g(f"s_mov_b32 {s(rN)}, 0")
    g(f"s_mov_b32 {s(rD)}, 0")
    g(f"s_mov_b32 {s(rS)}, 1024")
    g(f"s_mov_b32 {s(rC)}, -1")
    g(f"s_cmp_eq_u32 {s(jTy)}, 0")
    g(f"s_cbranch_scc1 {lnext}")
    g(f"s_cmp_eq_u32 {s(jTy)}, 1")
    g(f"s_cbranch_scc1 {lt1}")
    g(f"s_cmp_eq_u32 {s(jTy)}, 2")
    g(f"s_cbranch_scc1 {lt2}")
    g(f"s_cmp_eq_u32 {s(jTy)}, 5")
    g(f"s_cbranch_scc1 {lt5}")
    g.label(lt3)
    g(f"s_cmp_eq_u32 {s(jTy)}, 3")
    g(f"s_cselect_b32 {s(SAUX)}, {s(P_WG)}, {s(P_WU)}")
    g(f"s_cselect_b32 {s(SAUX + 1)}, {s(P_WG + 1)}, {s(P_WU + 1)}")
    g(f"s_and_b32 {s(SAUX + 1)}, {s(SAUX + 1)}, 0xffff")
    g(f"s_mov_b32 {s(SAUX + 2)}, {640 * 3456}")
    g(f"s_mov_b32 {s(SAUX + 3)}, 0x20000")
    g(f"s_mov_b32 {s(jRS)}, 3456")
    g(f"s_mov_b32 {s(rN)}, 7")
    g(f"s_mov_b32 {s(rS)}, 2048")
    g(f"s_sub_u32 s3, {s(jTy)}, 3")
    g(f"s_mul_i32 {s(rD)}, {s(sC)}, 20")
    g(f"s_add_u32 {s(rD)}, {s(rD)}, {s(jT)}")
    g(f"s_mul_i32 {s(rD)}, {s(rD)}, 14")
    g(f"s_add_u32 {s(rD)}, {s(rD)}, s3")
    g(f"s_lshl_b32 {s(rD)}, {s(rD)}, 10")
    g(f"s_add_u32 {s(rD)}, {s(rD)}, {WF3}")
    g(f"s_lshl_b32 {s(rC)}, {s(sC)}, 1")
    g(f"s_add_u32 {s(rC)}, {s(rC)}, s3")
    g(f"s_mul_i32 {s(rC)}, {s(rC)}, 20")
    g(f"s_add_u32 {s(rC)}, {s(rC)}, {s(jT)}")
    g(f"s_lshl_b32 {s(rC)}, {s(rC)}, 9")
    g(f"s_add_u32 {s(rC)}, {s(rC)}, {CS3}")
    g(f"s_cmp_eq_u32 {s(sC)}, 15")
    g(f"s_cselect_b32 s3, 4, 14")
    g(f"s_cselect_b32 {s(sT4)}, 8, 0")
    g(f"v_subrev_u32 {v(x0)}, {s(sT4)}, {v(cc)}")
    g(f"v_cmp_le_u32 vcc, 12, {v(cc)}")
    g(f"v_cndmask_b32 {v(x0)}, {v(cc)}, {v(x0)}, vcc")
    g(f"v_lshlrev_b32 {v(vo)}, 4, {v(x0)}")
    g(f"s_mul_i32 {s(sT4)}, {s(sC)}, 224")
    g(f"v_add_u32 {v(vo)}, {s(sT4)}, {v(vo)}")
    g(f"v_bfrev_b32 {v(x1)}, 1")
    g(f"v_cmp_gt_u32 {s(sT4, 2)}, s3, {v(cc)}")
    g(f"v_cmp_le_u32 vcc, 12, {v(cc)}")
    g(f"s_or_b64 vcc, vcc, {s(sT4, 2)}")
    g(f"v_cndmask_b32 {v(vo)}, {v(x1)}, {v(vo)}, vcc")
    g(f"v_cmp_le_u32 vcc, 14, {v(cc)}")
    g(f"v_cndmask_b32 {v(vo)}, {v(vo)}, {v(x1)}, vcc")
    g(f"s_branch {lkx}")
    g.label(lt1)
    set_aux(P_WQKV, 640 * 3840)
    g(f"s_mov_b32 {s(jRS)}, 3840")
    g(f"s_mov_b32 {s(rN)}, 8")
    g(f"s_mul_i32 {s(rC)}, {s(sC)}, 20")
    g(f"s_add_u32 {s(rC)}, {s(rC)}, {s(jT)}")
    g(f"s_lshl_b32 {s(rD)}, {s(rC)}, 13")
    g(f"s_add_u32 {s(rD)}, {s(rD)}, {WF1}")
    g(f"s_lshl_b32 {s(rC)}, {s(rC)}, 9")
    g(f"s_add_u32 {s(rC)}, {s(rC)}, {CS1}")
    g(f"v_mul_u32_u24 {v(x0)}, 205, {v(cc)}")
    g(f"v_lshrrev_b32 {v(x0)}, 10, {v(x0)}")
    g(f"v_mul_u32_u24 {v(x1)}, 5, {v(x0)}")
    g(f"v_sub_u32 {v(vo)}, {v(cc)}, {v(x1)}")
    g(f"v_lshlrev_b32 {v(vo)}, 4, {v(vo)}")
    g(f"v_add_u32 {v(x1)}, 1, {v(x0)}")
    g(f"v_cmp_eq_u32 vcc, 2, {v(x0)}")
    g(f"v_cndmask_b32 {v(x1)}, {v(x1)}, 0, vcc")
    g(f"s_movk_i32 s3, 1280")
    g(f"v_mad_u32_u24 {v(vo)}, {v(x1)}, s3, {v(vo)}")
    g(f"s_mul_i32 s3, {s(sC)}, 80")
    g(f"v_add_u32 {v(vo)}, s3, {v(vo)}")
    g(f"v_bfrev_b32 {v(x1)}, 1")
    g(f"v_cmp_eq_u32 vcc, 15, {v(cc)}")
    g(f"v_cndmask_b32 {v(vo)}, {v(vo)}, {v(x1)}, vcc")
    g.label(lkx)
    g(f"s_lshr_b32 {s(jB)}, {s(jT)}, 1")
    g(f"s_mul_i32 {s(jB)}, {s(jB)}, 80")
    g(f"s_and_b32 s3, {s(jT)}, 1")
    g(f"s_lshl_b32 s3, s3, 5")
    g(f"s_add_u32 {s(jB)}, {s(jB)}, s3")
    g(f"s_mov_b32 {s(jA)}, 8")
    g(f"s_mov_b32 {s(jBb)}, 4")
    g(f"s_mov_b32 {s(jC)}, 16")
    g(f"s_cmp_lt_u32 {s(jT)}, 16")
    g(f"s_cbranch_scc1 {lissue}")
    g(f"s_sub_u32 {s(jB)}, {s(jT)}, 16")
    g(f"s_mul_i32 {s(jB)}, {s(jB)}, 160")
    g(f"s_add_u32 {s(jB)}, {s(jB)}, 64")
    g(f"s_mov_b32 {s(jA)}, 80")
    g(f"s_mov_b32 {s(jBb)}, 8")
    g(f"s_mov_b32 {s(jC)}, 4")
    g(f"s_branch {lissue}")
    g.label(lt2)
    set_aux(P_WO, 640 * 1280)
    g(f"s_mul_i32 {s(rD)}, {s(sCT)}, 20")
    g(f"s_add_u32 {s(rD)}, {s(rD)}, {s(jT)}")
    g(f"s_mul_i32 {s(rD)}, {s(rD)}, {5 * KB}")
    g(f"s_add_u32 {s(rD)}, {s(rD)}, {WF2}")
    g(f"s_mul_i32 {s(jB)}, {s(jT)}, 40")
    g(f"s_mov_b32 {s(jA)}, 8")
    g(f"s_mov_b32 {s(jBb)}, 4")
    g(f"s_mov_b32 {s(jC)}, 16")
    g(f"s_cmp_lt_u32 {s(jT)}, 16")
    g(f"s_cbranch_scc1 {lsh}")
    g(f"s_sub_u32 {s(jB)}, {s(jT)}, 16")
    g(f"s_mul_i32 {s(jB)}, {s(jB)}, 160")
    g(f"s_add_u32 {s(jB)}, {s(jB)}, 32")
    g(f"s_mov_b32 {s(jA)}, 80")
    g(f"s_mov_b32 {s(jBb)}, 40")
    g(f"s_mov_b32 {s(jC)}, 4")
    g(f"s_branch {lsh}")
    g.label(lt5)
    set_aux(P_WD, 1728 * 1280)
    g(f"s_mul_i32 {s(rD)}, {s(sCT)}, 54")
    g(f"s_add_u32 {s(rD)}, {s(rD)}, {s(jT)}")
    g(f"s_mul_i32 {s(rD)}, {s(rD)}, {5 * KB}")
    g(f"s_add_u32 {s(rD)}, {s(rD)}, {WF4}")
    g(f"s_mul_i32 s3, {s(jT)}, 171")
    g(f"s_lshr_b32 s3, s3, 9")
    g(f"s_mul_i32 {s(jB)}, s3, 16")
    g(f"s_lshl_b32 s3, {s(jT)}, 5")
    g(f"s_add_u32 {s(jB)}, {s(jB)}, s3")
    g(f"s_mov_b32 {s(jA)}, 8")
    g(f"s_mov_b32 {s(jBb)}, 4")
    g(f"s_mov_b32 {s(jC)}, 16")
    g(f"s_cmp_lt_u32 {s(jT)}, 46")
    g(f"s_cbranch_scc1 {lsh}")
    g(f"s_sub_u32 {s(jB)}, {s(jT)}, 46")
    g(f"s_mul_i32 {s(jB)}, {s(jB)}, 224")
    g(f"s_add_u32 {s(jB)}, {s(jB)}, 96")
    g(f"s_cmp_eq_u32 {s(jT)}, 53")
    g(f"s_cselect_b32 {s(jA)}, 48, 112")
    g(f"s_mov_b32 {s(jBb)}, 8")
    g(f"s_mov_b32 {s(jC)}, 4")
    g.label(lsh)
    g(f"s_mov_b32 {s(jRS)}, 1280")
    g(f"s_mov_b32 {s(rN)}, 5")
    g(f"s_mul_i32 s3, {s(sCT)}, 160")
    g(f"v_lshlrev_b32 {v(vo)}, 4, {v(cc)}")
    g(f"v_add_u32 {v(vo)}, s3, {v(vo)}")
    g(f"v_bfrev_b32 {v(x1)}, 1")
    g(f"v_cmp_le_u32 vcc, 10, {v(cc)}")
    g(f"v_cndmask_b32 {v(vo)}, {v(vo)}, {v(x1)}, vcc")
    g.fence()
    g.label(lissue)
    g(f"v_mad_u32_u24 {v(vo)}, {v(r4)}, {s(jRS)}, {v(vo)}")
    for r in (jB, jA, jBb, jC):
        g(f"s_mul_i32 {s(r)}, {s(r)}, {s(jRS)}")
    g(f"s_lshl_b32 {s(sT4)}, {s(sWV)}, 14")
    g(f"s_lshl_b32 s3, {s(jSlot)}, 13")
    g(f"s_add_u32 {s(sT4)}, {s(sT4)}, s3")
    for i in range(8):
        g(f"s_mov_b32 s3, {s(jB)}")
        if i & 2:
            g(f"s_add_u32 s3, s3, {s(jA)}")
        if i & 1:
            g(f"s_add_u32 s3, s3, {s(jBb)}")
        if i & 4:
            g(f"s_add_u32 s3, s3, {s(jC)}")
        g(f"s_add_u32 m0, {s(sT4)}, {i * 1024}")
        g(f"buffer_load_dwordx4 {v(vo)}, {s(SAUX, 4)}, s3 offen lds")
    g.label(lnext)
    g(f"s_cmp_eq_u32 {s(jSlot)}, 0")
    lsecond = g.newlabel("jsecond")
    g(f"s_cbranch_scc0 {lsecond}")
    for d, r in zip(R0, (rD, rS, rN, rC)):
        g(f"s_mov_b32 {s(d)}, {s(r)}")
    g(f"s_mov_b32 {s(jSlot)}, 1")
    g(f"s_mov_b32 {s(jTy)}, {s(jTy1)}")
    g(f"s_mov_b32 {s(jT)}, {s(jT1)}")
    g.fence()
    g(f"s_branch {lloop}")
    g.label(lsecond)
    for d, r in zip(R1, (rD, rS, rN, rC)):
        g(f"s_mov_b32 {s(d)}, {s(r)}")

    g.wait_all()
    stamp(1, "prep loaded")
    for b in range(5):
        for h in range(2):
            g(f"v_lshlrev_b32 {v(XR + 4 * b + 2 * h)}, 16, {v(XL + 2 * b + h)}")
            g(f"v_and_b32 {v(XR + 4 * b + 2 * h + 1)}, 0xffff0000, {v(XL + 2 * b + h)}")
    ta, ones, FR, CS, c0 = T[0], 60, 64, 96, 128
    g(f"v_lshrrev_b32 {v(T[1])}, 2, {v(vLANE)}")
    g(f"v_lshlrev_b32 {v(ta)}, 8, {v(T[1])}")
    g(f"v_and_b32 {v(T[1])}, 3, {v(vLANE)}")
    g(f"v_lshl_add_u32 {v(ta)}, {v(T[1])}, 3, {v(ta)}")
    g(f"s_lshl_b32 s3, {s(sWV)}, 14")
    g(f"v_add_u32 {v(ta)}, s3, {v(ta)}")
    for i in range(4):
        g(f"v_mov_b32 {v(ones + i)}, 0x3f803f80")
    g(f"v_lshlrev_b32 {v(T[2])}, 2, {v(vLANE)}")
    g(f"s_mov_b32 {s(jSlot)}, 0")
    lo, lend, lnocs = g.newlabel("oloop"), g.newlabel("oend"), g.newlabel("nocs")
    lskip = g.newlabel("oskip")
    g.fence()
    g.label(lo)
    g(f"s_cmp_eq_u32 {s(R0[2])}, 0")
    g(f"s_cbranch_scc1 {lskip}")
    for nb in range(8):
        for h in range(2):
            g(f"ds_read_b64_tr_b16 {v(FR + 4 * nb + 2 * h, 2)}, {v(ta)} offset:{h * 4096 + nb * 32}")
    g("s_waitcnt lgkmcnt(0)")
    for nb in range(8):
        g(f"v_mfma_f32_16x16x32_bf16 {v(CS + 4 * nb, 4)}, {v(ones, 4)}, {v(FR + 4 * nb, 4)}, 0")
    lst = g.newlabel("stdone")
    for nb in range(8):
        if nb in (5, 7):
            g(f"s_cmp_eq_u32 {s(R0[2])}, {nb}")
            g(f"s_cbranch_scc1 {lst}")
        g(f"buffer_store_dwordx4 {v(FR + 4 * nb, 4)}, {v(vL16)}, {s(SWS, 4)}, {s(R0[0])} offen sc1")
        g(f"s_add_u32 {s(R0[0])}, {s(R0[0])}, {s(R0[1])}")
    g.label(lst)
    g(f"s_cmp_eq_u32 {s(R0[3])}, -1")
    g(f"s_cbranch_scc1 {lskip}")
    g.nop(8)
    for half in range(2):
        g(f"v_mov_b32 {v(c0 + half)}, {v(CS + 16 * half)}")
        for q in range(1, 4):
            g(f"s_lshl_b64 vcc, {s(sMG0, 2)}, {16 * q}")
            g(f"v_cndmask_b32 {v(c0 + half)}, {v(c0 + half)}, {v(CS + 16 * half + 4 * q)}, vcc")
        g(f"buffer_store_dword {v(c0 + half)}, {v(T[2])}, {s(SWS, 4)}, {s(R0[3])} offen offset:{256 * half} sc1")
    g.label(lskip)
    g(f"s_cmp_eq_u32 {s(jSlot)}, 1")
    g(f"s_cbranch_scc1 {lend}")
    g(f"s_mov_b32 {s(jSlot)}, 1")
    for d, r in zip(R0, R1):
        g(f"s_mov_b32 {s(d)}, {s(r)}")
    g(f"v_add_u32 {v(ta)}, 8192, {v(ta)}")
    g.nop(8)
    g(f"s_branch {lo}")
    g.label(lend)
    g.nop(8)
    g("s_branch L_epi4_x")


def stats_loads(regs):
    g(f"s_sub_u32 {s(sT0)}, {s(sXI)}, 1")
    g(f"s_mul_i32 {s(sT0)}, {s(sT0)}, {STSZ}")
    g(f"s_lshl_b32 {s(sT1)}, {s(sRA)}, 10")
    g(f"s_add_u32 {s(sT0)}, {s(sT0)}, {s(sT1)}")
    g(f"s_add_u32 {s(sT0)}, {s(sT0)}, {ST}")
    t = regs[8]
    g(f"v_and_b32 {v(t)}, 15, {v(vLANE)}")
    g(f"v_lshlrev_b32 {v(t)}, 3, {v(t)}")
    g(f"v_and_b32 {v(regs[9])}, 48, {v(vLANE)}")
    g(f"v_lshl_add_u32 {v(t)}, {v(regs[9])}, 4, {v(t)}")
    for k in range(2):
        for j in range(2):
            g.vm(f"buffer_load_dwordx2 {v(regs[4 * k + 2 * j], 2)}, {v(t)}, {s(SWS, 4)}, {s(sT0)} offen "
                 f"offset:{k * 1024 + j * 128} sc1", tag="st")


def stats_ops(regs):
    r = regs
    ops = []

    def o1():
        g.wait(vm="st")
        for k in range(2):
            g(f"v_pk_add_f32 {v(r[4 * k], 2)}, {v(r[4 * k], 2)}, {v(r[4 * k + 2], 2)}")
    ops.append(o1)
    vals, tm = [r[0], r[1], r[4], r[5]], [r[2], r[3], r[6], r[7]]
    for sw in ("v_permlane16_swap_b32", "v_permlane32_swap_b32"):
        ops.append(lambda: [g(f"v_mov_b32 {v(t)}, {v(x)}") for x, t in zip(vals[:2], tm[:2])])
        ops.append(lambda: [g(f"v_mov_b32 {v(t)}, {v(x)}") for x, t in zip(vals[2:], tm[2:])])
        ops.append(lambda sw=sw: [g(f"{sw} {v(x)}, {v(t)}") for x, t in zip(vals[:2], tm[:2])])
        ops.append(lambda sw=sw: [g(f"{sw} {v(x)}, {v(t)}") for x, t in zip(vals[2:], tm[2:])])
        ops.append(lambda: [g(f"v_add_f32 {v(x)}, {v(x)}, {v(t)}") for x, t in zip(vals[:2], tm[:2])])
        ops.append(lambda: [g(f"v_add_f32 {v(x)}, {v(x)}, {v(t)}") for x, t in zip(vals[2:], tm[2:])])
    for k in range(2):
        sm, sq, t = r[4 * k], r[4 * k + 1], r[4 * k + 2]

        def oa(sm=sm, sq=sq, t=t):
            g(f"v_mul_f32 {v(sm)}, 0xbacccccd, {v(sm)}")
            g(f"v_mul_f32 {v(sq)}, 0x3acccccd, {v(sq)}")

        def ob(sm=sm, sq=sq, t=t):
            g(f"v_fma_f32 {v(sq)}, -{v(sm)}, {v(sm)}, {v(sq)}")
            g(f"v_max_f32 {v(sq)}, 0, {v(sq)}")

        def oc(sm=sm, sq=sq, t=t):
            g(f"v_add_f32 {v(sq)}, 0x3727c5ac, {v(sq)}")
            g(f"v_rsq_f32 {v(sq)}, {v(sq)}")
        ops += [oa, ob, oc]

    def ow0():
        g(f"v_and_b32 {v(r[8])}, 15, {v(vLANE)}")
        g(f"s_lshl_b32 {s(sT0)}, {s(sWV)}, 8")
        g(f"s_add_u32 {s(sT0)}, {s(sT0)}, {TBL}")
        g(f"v_lshl_add_u32 {v(r[8])}, {v(r[8])}, 2, {s(sT0)}")
    ops.append(ow0)
    for k in range(2):
        ops.append(lambda k=k: (g.lg(f"ds_write_b32 {v(r[8])}, {v(r[4 * k])} offset:{64 * k}", tag="tw"),
                                g.lg(f"ds_write_b32 {v(r[8])}, {v(r[4 * k + 1])} offset:{128 + 64 * k}", tag="tw")))
    return ops


def cs_loads(regs, addr, base_const, per_tile):
    g(f"s_mul_i32 {s(sT2)}, {s(sC)}, {per_tile}")
    g(f"s_add_u32 {s(sT2)}, {s(sT2)}, {base_const}")
    g(f"v_lshrrev_b32 {v(addr)}, 2, {v(vT16)}")
    if per_tile == 2 * 20 * 512:
        g(f"v_lshrrev_b32 {v(regs[0])}, 9, {v(addr)}")
        g(f"v_mul_u32_u24 {v(regs[0])}, {20 * 512 - 512}, {v(regs[0])}")
        g(f"v_add_u32 {v(addr)}, {v(addr)}, {v(regs[0])}")
    else:
        g(f"v_and_b32 {v(addr)}, 511, {v(addr)}")
    ops = []
    for t in range(20):
        def ld(t=t):
            if t and t % 8 == 0:
                g(f"s_add_u32 {s(sT2)}, {s(sT2)}, 4096")
            g.vm(f"buffer_load_dword {v(regs[t])}, {v(addr)}, {s(SWS, 4)}, {s(sT2)} offen offset:{(t % 8) * 512} sc1",
                 tag="cs")
        ops.append(ld)
    return ops


def cs_sum_ops(regs, addr):
    ops = []

    def first():
        g.wait(vm="cs")
        g(f"v_add_f32 {v(regs[0])}, {v(regs[0])}, {v(regs[1])}")
    ops.append(first)
    for t in range(2, 20, 2):
        ops.append(lambda t=t: (g(f"v_add_f32 {v(regs[0])}, {v(regs[0])}, {v(regs[t])}"),
                                g(f"v_add_f32 {v(regs[0])}, {v(regs[0])}, {v(regs[t + 1])}")))

    def wr():
        g(f"v_lshrrev_b32 {v(addr)}, 2, {v(vT16)}")
        g(f"v_add_u32 {v(addr)}, {CST}, {v(addr)}")
        g.lg(f"ds_write_b32 {v(addr)}, {v(regs[0])}", tag="tw")
    ops.append(wr)
    return ops


def ring_gemm(NB, ACC, WB, NWB, XW, NXW, transposed, issued, bar_every, pre_ops, side, xoff):
    Q = 20 * NB
    NG = Q // 8
    D = NWB - 1

    def xload(t):
        for k in range(2):
            if k == 0:
                so, off = xoff, t * 1024
            else:
                so, off = xoff + 1, t * 1024
            g(f"s_add_u32 s3, {s(so)}, {off}")
            g.vm(f"buffer_load_dwordx4 {v(XW + (t % NXW) * 8 + 4 * k, 4)}, {v(vL16)}, {s(SWS, 4)}, s3 offen sc1",
                 tag=("X", t))

    def wread(q):
        base, off = lds_base((q * 1024) % RING)
        g.lg(f"ds_read_b128 {v(WB + (q % NWB) * 4, 4)}, {v(base)} offset:{off}", tag=("W", q))

    xload(0)
    xload(1)
    for op in pre_ops:
        op()
    for t in range(2, NXW):
        xload(t)
    bars = list(range(0, Q, bar_every))
    fifo = []
    side = sorted(side, key=lambda z: z[0])
    state = dict(issued=issued)

    def barrier_at(f0):
        nxt = min([b for b in bars if b > f0] + [Q])
        need = min(Q - 1, nxt - 1 + D) // 8
        assert need < state["issued"], (f0, need, state["issued"])
        g.wait(vm=[("G", i) for i in range(need + 1)])
        if not OPT.get("NOBAR"):
            g("s_barrier")
        free = f0 // 8
        while state["issued"] < NG and state["issued"] - NRG < free:
            if not OPT.get("NODMA"):
                fifo.append(lambda G=state["issued"]: dma_group(G))
            state["issued"] += 1

    barrier_at(0)
    for q in range(D):
        wread(q)
    for q in range(Q):
        t, nb = divmod(q, NB)
        if q in bars and q > 0:
            while fifo:
                fifo.pop(0)()
            barrier_at(q)
        if nb == 0:
            g.wait(vm=[("X", t)], lg=[("W", q)])
            if t >= 1 and t - 1 + NXW < 20 and not OPT.get("NOX"):
                fifo.insert(0, lambda tt=t - 1 + NXW: xload(tt))
        elif not OPT.get("NOWAITL"):
            g.wait(lg=[("W", q)])
        w = v(WB + (q % NWB) * 4, 4)
        for k in range(2):
            acc = v(ACC + (nb * 2 + k) * 4, 4)
            x = v(XW + (t % NXW) * 8 + 4 * k, 4)
            c = "0" if t == 0 else acc
            if transposed(nb):
                g(f"v_mfma_f32_16x16x32_bf16 {acc}, {w}, {x}, {c}")
            else:
                g(f"v_mfma_f32_16x16x32_bf16 {acc}, {x}, {w}, {c}")
            if k == 0 and q + D < Q:
                wread(q + D)
        if fifo:
            fifo.pop(0)()
        elif side and side[0][0] <= q:
            side.pop(0)[1]()
    while fifo:
        fifo.pop(0)()
    while side:
        side.pop(0)[1]()


def wpf_ops(n, base_const, per_ct, wave_starts, regname):
    g(f"s_mul_i32 {s(sPFOFF)}, {s(sCT)}, {per_ct}")
    g(f"s_add_u32 {s(sPFOFF)}, {s(sPFOFF)}, {base_const}")
    if wave_starts == "k2":
        g(f"s_mul_i32 s3, {s(sWV)}, {25 * KB}")
    else:
        g(f"s_mul_i32 s3, {s(sWV)}, 14")
        g(f"s_cmp_eq_u32 {s(sWV)}, 3")
        g(f"s_cselect_b32 s3, 41, s3")
        g(f"s_mul_i32 s3, s3, {5 * KB}")
    g(f"s_add_u32 {s(sPFOFF)}, {s(sPFOFF)}, s3")
    ops = []
    for i in range(n):
        def ld(i=i):
            if i and i % 4 == 0:
                g(f"s_add_u32 {s(sPFOFF)}, {s(sPFOFF)}, 4096")
            g.vm(f"buffer_load_dwordx4 {regname(i)}, {v(vL16)}, {s(SWS, 4)}, {s(sPFOFF)} offen offset:{(i % 4) * 1024} sc1",
                 tag=("WP", i))
        ops.append(ld)
    return ops


def reg_gemm(NT, XW, NXW, ACC, wreg, xbase, ntot, side, skip_last):
    for p in range(4):
        g(f"s_add_u32 s3, {s(sWV)}, {p + 1}")
        g(f"s_and_b32 s3, s3, 3")
        g(f"s_mul_i32 s3, s3, {ntot * KB}")
        g(f"s_add_u32 {s(sXOFF + p)}, {s(xbase)}, s3")
    N = 4 * NT

    def xload(i):
        p, t = divmod(i, NT)
        if skip_last and t == NT - 1:
            g(f"s_add_u32 s3, {s(sXOFF + p)}, {s(sX14)}")
        else:
            g(f"s_add_u32 s3, {s(sXOFF + p)}, {t * KB}")
        g.vm(f"buffer_load_dwordx4 {v(XW + (i % NXW) * 4, 4)}, {v(vL16)}, {s(SWS, 4)}, s3 offen sc1", tag=("X", i))

    for i in range(min(NXW, N)):
        xload(i)
    ra = [T[0], T[1], T[2]]
    for p in range(3):
        g(f"s_add_u32 s3, {s(sWV)}, {p + 1}")
        g(f"s_and_b32 s3, s3, 3")
        g(f"s_mul_i32 s3, s3, {15 * KB}")
        g(f"s_add_u32 s3, s3, {RED + p * 5 * KB}")
        g(f"v_add_u32 {v(ra[p])}, s3, {v(vL16)}")
    g(f"s_mul_i32 s3, {s(sWV)}, {15 * KB}")
    g(f"s_add_u32 s3, s3, {RED}")
    g(f"v_add_u32 {v(T[3])}, s3, {v(vL16)}")
    fifo = []
    side = list(side)
    for i in range(N):
        p, t = divmod(i, NT)
        acc0 = ACC + (p & 1) * 20
        tags = [("X", i)] + [("WP", t * 5 + nb) for nb in range(5)]
        g.wait(vm=tags)
        sv = None
        if skip_last and t == NT - 1:
            lab = g.newlabel("skipk")
            g(f"s_cmp_ge_u32 {s(sWV)}, 2")
            g(f"s_cbranch_scc1 {lab}")
            sv = begin_skip()
        for nb in range(5):
            acc = v(acc0 + 4 * nb, 4)
            g(f"v_mfma_f32_16x16x32_bf16 {acc}, {wreg(t * 5 + nb)}, {v(XW + (i % NXW) * 4, 4)}, {'0' if t == 0 else acc}")
            if sv is None and nb in (1, 3) and fifo:
                fifo.pop(0)()
        if sv is not None:
            end_skip(sv)
            g.label(lab)
        if i + NXW < N:
            xload(i + NXW)
        elif side:
            side.pop(0)()
        if t == NT - 1 and p < 3:
            def mk(nb, p=p, acc0=acc0):
                return lambda: g.lg(f"ds_write_b128 {v(ra[p])}, {v(acc0 + 4 * nb, 4)} offset:{nb * 1024}", tag="rw")
            fifo += [lambda: None, lambda: None] + [mk(nb) for nb in range(5)]
    while fifo:
        fifo.pop(0)()
    while side:
        side.pop(0)()
    g.wait_all(vm=False)
    g("s_barrier")
    RR = 40
    for j in range(15):
        g.lg(f"ds_read_b128 {v(RR + 4 * j, 4)}, {v(T[3])} offset:{j * 1024}", tag=("R", j))
    accF = ACC + 20
    for p in range(3):
        g.wait(lg=[("R", p * 5 + 4)])
        for i in range(0, 20, 2):
            g(f"v_pk_add_f32 {v(accF + i, 2)}, {v(accF + i, 2)}, {v(RR + 20 * p + i, 2)}")
    for i in range(0, 20, 2):
        g(f"v_pk_add_f32 {v(XR + i, 2)}, {v(XR + i, 2)}, {v(accF + i, 2)}")


PK = 100


def epi_pack():
    for b in range(5):
        for h in range(2):
            g(f"v_cvt_pk_bf16_f32 {v(PK + 2 * b + h)}, {v(XR + 4 * b + 2 * h)}, {v(XR + 4 * b + 2 * h + 1)}")
    g(f"v_mov_b32 {v(PK + 10)}, {v(PK + 8)}")
    g(f"v_mov_b32 {v(PK + 11)}, {v(PK + 9)}")


def epi_x():
    epi_pack()
    g(f"s_mul_i32 {s(sT0)}, {s(sXI)}, {XSZ}")
    g(f"s_mul_i32 {s(sT1)}, {s(sR16)}, {20 * KB}")
    g(f"s_add_u32 {s(sT0)}, {s(sT0)}, {s(sT1)}")
    g(f"s_add_u32 {s(sT0)}, {s(sT0)}, {XF}")
    g(f"s_lshl_b32 {s(sT1)}, {s(sCT)}, 11")
    g(f"s_add_u32 {s(sT1)}, {s(sT1)}, {s(sT0)}")
    g.vm(f"buffer_store_dwordx4 {v(PK, 4)}, {v(vL16)}, {s(SWS, 4)}, {s(sT1)} offen sc1")
    g.vm(f"buffer_store_dwordx4 {v(PK + 4, 4)}, {v(vL16)}, {s(SWS, 4)}, {s(sT1)} offen offset:1024 sc1")
    for b in range(5):
        for h in range(2):
            g(f"v_lshlrev_b32 {v(XR + 4 * b + 2 * h)}, 16, {v(PK + 2 * b + h)}")
            g(f"v_and_b32 {v(XR + 4 * b + 2 * h + 1)}, 0xffff0000, {v(PK + 2 * b + h)}")
    g(f"v_permlane16_swap_b32 {v(PK + 8)}, {v(PK + 10)}")
    g(f"v_permlane16_swap_b32 {v(PK + 9)}, {v(PK + 11)}")
    g(f"s_lshr_b32 {s(sT1)}, {s(sCT)}, 1")
    g(f"s_lshl_b32 {s(sT1)}, {s(sT1)}, 10")
    g(f"s_and_b32 s3, {s(sCT)}, 1")
    g(f"s_lshl_b32 s3, s3, 9")
    g(f"s_add_u32 {s(sT1)}, {s(sT1)}, s3")
    g(f"s_add_u32 {s(sT1)}, {s(sT1)}, {s(sT0)}")
    g(f"s_add_u32 {s(sT1)}, {s(sT1)}, {16 * KB}")
    g(f"v_and_b32 {v(T[0])}, 15, {v(vLANE)}")
    g(f"v_lshrrev_b32 {v(T[1])}, 5, {v(vLANE)}")
    g(f"v_lshl_add_u32 {v(T[1])}, {v(T[1])}, 4, {v(T[0])}")
    g(f"v_lshlrev_b32 {v(T[1])}, 4, {v(T[1])}")
    g("s_mov_b32 exec_lo, 0xffff")
    g("s_mov_b32 exec_hi, 0xffff")
    g.vm(f"buffer_store_dwordx4 {v(PK + 8, 4)}, {v(T[1])}, {s(SWS, 4)}, {s(sT1)} offen sc1")
    g("s_mov_b64 exec, -1")
    sm, sq = T[2], T[4]
    g(f"v_pk_add_f32 {v(sm, 2)}, {v(XR, 2)}, {v(XR + 2, 2)}")
    g(f"v_pk_mul_f32 {v(sq, 2)}, {v(XR, 2)}, {v(XR, 2)}")
    g(f"v_pk_fma_f32 {v(sq, 2)}, {v(XR + 2, 2)}, {v(XR + 2, 2)}, {v(sq, 2)}")
    for i in range(4, 20, 2):
        g(f"v_pk_add_f32 {v(sm, 2)}, {v(sm, 2)}, {v(XR + i, 2)}")
        g(f"v_pk_fma_f32 {v(sq, 2)}, {v(XR + i, 2)}, {v(XR + i, 2)}, {v(sq, 2)}")
    g(f"v_add_f32 {v(T[2])}, {v(T[2])}, {v(T[3])}")
    g(f"v_add_f32 {v(T[3])}, {v(T[4])}, {v(T[5])}")
    reduce_g([T[2], T[3]], [T[4], T[5]])
    g(f"s_mul_i32 {s(sT0)}, {s(sXI)}, {STSZ}")
    g(f"s_lshl_b32 {s(sT1)}, {s(sR16)}, 10")
    g(f"s_add_u32 {s(sT0)}, {s(sT0)}, {s(sT1)}")
    g(f"s_lshl_b32 {s(sT1)}, {s(sCT)}, 7")
    g(f"s_add_u32 {s(sT0)}, {s(sT0)}, {s(sT1)}")
    g(f"s_add_u32 {s(sT0)}, {s(sT0)}, {ST}")
    g(f"v_lshlrev_b32 {v(T[0])}, 3, {v(T[0])}")
    g(f"s_mov_b64 exec, {s(sMG0, 2)}")
    g.vm(f"buffer_store_dwordx2 {v(T[2], 2)}, {v(T[0])}, {s(SWS, 4)}, {s(sT0)} offen sc1")
    g("s_mov_b64 exec, -1")
    g(f"s_add_u32 {s(sXI)}, {s(sXI)}, 1")


def set_xoff_ring():
    g(f"s_sub_u32 {s(sXOFF)}, {s(sXI)}, 1")
    g(f"s_mul_i32 {s(sXOFF)}, {s(sXOFF)}, {XSZ}")
    g(f"s_mul_i32 s3, {s(sRA)}, {20 * KB}")
    g(f"s_add_u32 {s(sXOFF)}, {s(sXOFF)}, s3")
    g(f"s_add_u32 {s(sXOFF)}, {s(sXOFF)}, {XF}")
    g(f"s_add_u32 {s(sXOFF + 1)}, {s(sXOFF)}, {20 * KB}")


def set_goff(base, per_tile, group):
    g(f"s_mul_i32 {s(sGOFF)}, {s(sC)}, {per_tile}")
    g(f"s_add_u32 {s(sGOFF)}, {s(sGOFF)}, {base + group * 8 * KB}")


def tbl_addrs(tN, tT):
    g(f"s_lshl_b32 s3, {s(sWV)}, 8")
    g(f"s_add_u32 s3, s3, {TBL}")
    if tN is not None:
        g(f"v_and_b32 {v(tN)}, 48, {v(vLANE)}")
        g(f"v_add_u32 {v(tN)}, s3, {v(tN)}")
    g(f"v_and_b32 {v(tT)}, 15, {v(vLANE)}")
    g(f"v_lshl_add_u32 {v(tT)}, {v(tT)}, 2, s3")


BC1 = "op_sel_hi:[1,0,1]"


def k1():
    ACC, WB, NWB, XW, NXW = 40, 104, 6, 128, 14
    X2 = list(range(240, 256))
    g.label("L_k1")
    stamp(2, "k1 go")
    set_xoff_ring()
    st_regs = X2[:10]
    cs_regs = T[:8] + X2[:12]
    side = []
    f = 12
    for op in stats_ops(st_regs):
        side.append((f, op))
        f += 1
    holder = []
    side.append((f, lambda: holder.extend(cs_loads(cs_regs, X2[12], CS1, 20 * 512))))
    for i in range(20):
        side.append((f + 1 + i, lambda: holder.pop(0)()))
    f += 40
    for op in cs_sum_ops(cs_regs, X2[12]):
        side.append((f, op))
        f += 1
    holder2 = []
    side.append((f, lambda: holder2.extend(wpf_ops(25, WF2, 100 * KB, "k2", lambda i: a(4 * i, 4)))))
    for i in range(25):
        side.append((f + 1 + 2 * i, lambda: holder2.pop(0)()))
    ring_gemm(8, ACC, WB, NWB, XW, NXW, lambda nb: nb >= 5, NRG, 16, [lambda: stats_loads(st_regs)], side, sXOFF)
    stamp(3, "k1 loop")
    g.wait_all(vm=False)
    g("s_barrier")
    set_goff(WF3, 280 * KB, 0)
    for G in range(EARLY):
        dma_group(G)
    NM4, RS4, RL4 = 128, 136, 144
    NMT, RST, RLT = 152, 156, 160
    CN, CTT = 164, 176
    PKF, VF, PQ = 188, 200, 212
    TM = 228
    tbl_addrs(T[0], T[1])
    for k in range(2):
        g.lg(f"ds_read_b128 {v(NM4 + 4 * k, 4)}, {v(T[0])} offset:{64 * k}", tag="e")
        g.lg(f"ds_read_b128 {v(RS4 + 4 * k, 4)}, {v(T[0])} offset:{128 + 64 * k}", tag="e")
        g.lg(f"ds_read_b32 {v(NMT + 2 * k)}, {v(T[1])} offset:{64 * k}", tag="e")
        g.lg(f"ds_read_b32 {v(RST + 2 * k)}, {v(T[1])} offset:{128 + 64 * k}", tag="e")
    g(f"v_and_b32 {v(T[2])}, 15, {v(vLANE)}")
    g(f"v_lshlrev_b32 {v(T[2])}, 2, {v(T[2])}")
    g(f"v_add_u32 {v(T[2])}, {CST}, {v(T[2])}")
    g(f"v_and_b32 {v(T[3])}, 48, {v(vLANE)}")
    g(f"v_add_u32 {v(T[3])}, {CST}, {v(T[3])}")
    for b in range(5):
        g.lg(f"ds_read_b32 {v(CN + 2 * b)}, {v(T[2])} offset:{64 * b}", tag="e")
    for b in range(5, 8):
        g.lg(f"ds_read_b128 {v(CTT + 4 * (b - 5), 4)}, {v(T[3])} offset:{64 * b}", tag="e")
    for i in range(4):
        g(f"v_mov_b32 {v(TM + i)}, 0")
    g(f"v_lshlrev_b32 {v(T[4])}, 1, {v(vT16)}")
    g(f"v_add_u32 {v(T[4])}, {KVF}, {v(T[4])}")
    g.lg(f"ds_write_b128 {v(T[4])}, {v(TM, 4)}", tag="z")
    g.lg(f"ds_write_b128 {v(T[4])}, {v(TM, 4)} offset:16", tag="z")
    g.wait(lg=["e"])
    LOG2E = "0x3fb8aa3b"
    for i in range(8):
        g(f"v_mul_f32 {v(RL4 + i)}, {LOG2E}, {v(RS4 + i)}")
    for k in range(2):
        g(f"v_mul_f32 {v(RLT + 2 * k)}, {LOG2E}, {v(RST + 2 * k)}")

    def phi(u, rs, rl, bc, dst, tm):
        m = f" {BC1}" if bc else ""
        m2 = " op_sel_hi:[1,0]" if bc else ""
        g(f"v_pk_mul_f32 {v(tm, 2)}, {v(u, 2)}, {v(rl, 2)}{m2}")
        g(f"v_pk_fma_f32 {v(tm + 2, 2)}, {v(u, 2)}, {v(rs, 2)}, {s(sEPS6, 2)}{m}")
        g(f"v_exp_f32_e64 {v(tm)}, {v(tm)} clamp")
        g(f"v_exp_f32_e64 {v(tm + 1)}, {v(tm + 1)} clamp")
        g(f"v_max_f32 {v(tm + 2)}, {s(sEPS6)}, {v(tm + 2)}")
        g(f"v_max_f32 {v(tm + 3)}, {s(sEPS6)}, {v(tm + 3)}")
        g(f"v_pk_add_f32 {v(tm, 2)}, {v(tm, 2)}, {v(tm + 2, 2)}")
        g(f"v_cvt_pk_bf16_f32 {v(dst)}, {v(tm)}, {v(tm + 1)}")

    n = 0
    for b in range(5):
        for k in range(2):
            for h in range(2):
                u = ACC + (b * 2 + k) * 4 + 2 * h
                g(f"v_pk_fma_f32 {v(u, 2)}, {v(NM4 + 4 * k + 2 * h, 2)}, {v(CN + 2 * b, 2)}, {v(u, 2)} {BC1}")
                if b <= 2:
                    phi(u, RS4 + 4 * k + 2 * h, RL4 + 4 * k + 2 * h, False, PKF + 4 * b + 2 * k + h, TM + 4 * (n % 4))
                    n += 1
                if b >= 2:
                    g(f"v_pk_mul_f32 {v(u, 2)}, {v(u, 2)}, {v(RS4 + 4 * k + 2 * h, 2)}")
                    g(f"v_cvt_pk_bf16_f32 {v(VF + 4 * (b - 2) + 2 * k + h)}, {v(u)}, {v(u + 1)}")
    g(f"v_mov_b32 {v(T[5])}, 0x3f803f80")
    for i in range(4):
        g(f"v_cndmask_b32 {v(VF + i)}, {v(VF + i)}, {v(T[5])}, {s(sM8, 2)}")
    KC = 40
    pairs = [(0, 0), (0, 1), (1, 0), (1, 1), (1, 2), (2, 0), (2, 1), (2, 2)]
    for bd, be in pairs:
        g(f"v_mfma_f32_16x16x32_bf16 {v(KC + 4 * (3 * bd + be), 4)}, {v(PKF + 4 * bd, 4)}, {v(VF + 4 * be, 4)}, 0")
    for b in range(5, 8):
        for k in range(2):
            for h in range(2):
                u = ACC + (b * 2 + k) * 4 + 2 * h
                g(f"v_pk_fma_f32 {v(u, 2)}, {v(CTT + 4 * (b - 5) + 2 * h, 2)}, {v(NMT + 2 * k, 2)}, {v(u, 2)} {BC1}")
                dst = PQ + 8 * k + (2 * (b - 5) + h)
                phi(u, RST + 2 * k, RLT + 2 * k, True, dst, TM + 4 * (n % 4))
                n += 1
        if b == 5:
            g(f"s_mul_i32 s3, {s(sWV)}, {9 * KB}")
            g(f"s_add_u32 s3, s3, {KVS}")
            g(f"v_add_u32 {v(T[6])}, s3, {v(vL16)}")
            for bd, be in pairs:
                i = 3 * bd + be
                g.lg(f"ds_write_b128 {v(T[6])}, {v(KC + 4 * i, 4)} offset:{i * 1024}", tag="kw")
            g.wait_all(vm=False)
            g("s_barrier")
            for w in range(4):
                g.lg(f"ds_read_b128 {v(40 + 4 * w, 4)}, {v(vKVS)} offset:{w * 9 * KB}", tag="kr")
        if b == 6:
            g.wait(lg=["kr"])
            for w in range(1, 4):
                for h in range(2):
                    g(f"v_pk_add_f32 {v(40 + 2 * h, 2)}, {v(40 + 2 * h, 2)}, {v(40 + 4 * w + 2 * h, 2)}")
            g(f"s_mul_i32 {s(sT0)}, {s(sLAYER)}, {KVSZ}")
            g(f"s_lshl_b32 s3, {s(sC)}, 16")
            g(f"s_add_u32 {s(sT0)}, {s(sT0)}, s3")
            g(f"s_add_u32 {s(sT0)}, {s(sT0)}, {KVP}")
            g(f"s_lshl_b32 s3, {s(sRB)}, 12")
            g(f"s_add_u32 s3, s3, {s(sT0)}")
            g.vm(f"buffer_store_dwordx4 {v(40, 4)}, {v(vT16)}, {s(SWS, 4)}, s3 offen sc1")
    for k in range(2):
        g(f"v_mov_b32 {v(PQ + 8 * k + 6)}, 0")
        g(f"v_mov_b32 {v(PQ + 8 * k + 7)}, 0")
    stamp(4, "k1 epi")
    handoff(2, 2, sCTG, st=5)
    g(f"s_add_u32 {s(sCTG)}, {s(sCTG)}, 16")
    stamp(6, "xchg go")
    for r in range(16):
        g.vm(f"buffer_load_dwordx4 {v(40 + 4 * r, 4)}, {v(vT16)}, {s(SWS, 4)}, {s(sT0)} offen sc1", tag=("P", r))
        if r < 15:
            g(f"s_add_u32 {s(sT0)}, {s(sT0)}, 4096")
    for r in range(1, 16):
        if r % 4 == 1 or r == 15:
            g.wait(vm=[("P", min(15, r + 3))])
        for h in range(2):
            g(f"v_pk_add_f32 {v(40 + 2 * h, 2)}, {v(40 + 2 * h, 2)}, {v(40 + 4 * r + 2 * h, 2)}")
    g(f"v_cvt_pk_bf16_f32 {v(44)}, {v(40)}, {v(41)}")
    g(f"v_cvt_pk_bf16_f32 {v(45)}, {v(42)}, {v(43)}")
    g.lg(f"ds_write_b64 {v(vKVD)}, {v(44, 2)}", tag="fw")
    lz = g.newlabel("noz")
    g(f"s_cmp_lg_u32 {s(sWV)}, 3")
    g(f"s_cbranch_scc1 {lz}")
    sv = begin_skip()
    g("s_mov_b64 exec, 0x3ff00")
    for i in range(1, 8):
        g(f"ds_write_b64 {v(vKVD)}, {v(44, 2)} offset:{32 * i}")
    g("s_mov_b64 exec, -1")
    end_skip(sv)
    g.label(lz)
    g.wait_all(vm=False)
    g("s_barrier")
    F = 48
    fl = [(0, 0), (1, 0), (1, 1), (2, 0), (2, 1), (3, 0), (3, 1)]
    base, off = lds_base(KVF)
    for i, (b, tt) in enumerate(fl):
        g.lg(f"ds_read_b128 {v(F + 4 * i, 4)}, {v(base)} offset:{off + (2 * b + tt) * 1024}", tag=("F", i))
    NU = 128
    order = [5, 6, 0, 1, 2, 3, 4]
    g.wait(lg=[("F", 6)])
    for i in order:
        b, tt = fl[i]
        for k in range(2):
            d = v(NU + 16 * k + 4 * b, 4)
            g(f"v_mfma_f32_16x16x32_bf16 {d}, {v(F + 4 * i, 4)}, {v(PQ + 8 * k + 4 * tt, 4)}, {'0' if tt == 0 else d}")
    g(f"s_mul_i32 {s(sT0)}, {s(sLAYER)}, {XSZ}")
    g(f"s_mul_i32 s3, {s(sRA)}, {20 * KB}")
    g(f"s_add_u32 {s(sT0)}, {s(sT0)}, s3")
    g(f"s_add_u32 {s(sT0)}, {s(sT0)}, {OF}")
    g(f"s_lshl_b32 s3, {s(sC)}, 10")
    g(f"s_add_u32 {s(sT1)}, {s(sT0)}, s3")
    g(f"s_add_u32 {s(sT2)}, {s(sT1)}, {20 * KB}")
    g(f"s_lshr_b32 s3, {s(sC)}, 2")
    g(f"s_lshl_b32 s3, s3, 10")
    g(f"s_add_u32 {s(sT0)}, {s(sT0)}, s3")
    g(f"s_and_b32 s3, {s(sC)}, 3")
    g(f"s_lshl_b32 s3, s3, 8")
    g(f"s_add_u32 {s(sT0)}, {s(sT0)}, s3")
    g(f"s_add_u32 {s(sT0)}, {s(sT0)}, {16 * KB}")
    g(f"v_and_b32 {v(T[0])}, 15, {v(vLANE)}")
    g(f"v_lshlrev_b32 {v(T[0])}, 4, {v(T[0])}")
    g(f"v_bfe_u32 {v(T[1])}, {v(vLANE)}, 4, 1")
    g(f"v_mul_u32_u24 {v(T[1])}, {20 * KB}, {v(T[1])}")
    g(f"v_add_u32 {v(T[0])}, {v(T[0])}, {v(T[1])}")
    RC = 160
    OP = 176
    for k in range(2):
        dn = NU + 16 * k + 12
        g(f"v_add_f32 {v(dn)}, {s(sEPS6)}, {v(dn)}")
        g(f"v_add_f32 {v(dn + 1)}, {s(sEPS6)}, {v(dn + 1)}")
        g(f"v_rcp_f32 {v(RC + 8 * k)}, {v(dn)}")
        g(f"v_rcp_f32 {v(RC + 8 * k + 2)}, {v(dn + 1)}")
        g(f"v_cndmask_b32 {v(RC + 8 * k + 4)}, {v(RC + 8 * k + 2)}, {v(RC + 8 * k)}, {s(sMG0, 2)}")
    for k in range(2):
        for b in range(3):
            rc = RC + 8 * k + (0, 4, 2)[b]
            for h in range(2):
                u = NU + 16 * k + 4 * b + 2 * h
                g(f"v_pk_mul_f32 {v(u, 2)}, {v(u, 2)}, {v(rc, 2)} op_sel_hi:[1,0]")
                dst = OP + 4 * k + 2 * b + h if b < 2 else OP + 8 + 2 * k + h
                g(f"v_cvt_pk_bf16_f32 {v(dst)}, {v(u)}, {v(u + 1)}")
        g.vm(f"buffer_store_dwordx4 {v(OP + 4 * k, 4)}, {v(vL16)}, {s(SWS, 4)}, {s((sT1, sT2)[k])} offen sc1")
    g(f"v_permlane16_swap_b32 {v(OP + 8)}, {v(OP + 10)}")
    g(f"v_permlane16_swap_b32 {v(OP + 9)}, {v(OP + 11)}")
    g("s_mov_b64 exec, 0xffffffff")
    g.vm(f"buffer_store_dwordx4 {v(OP + 8, 4)}, {v(T[0])}, {s(SWS, 4)}, {s(sT0)} offen sc1")
    g("s_mov_b64 exec, -1")
    stamp(7, "o done")
    g(f"s_add_u32 {s(sRTG)}, {s(sRTG)}, 16")
    handoff(1, 1, sRTG, st=8)
    stamp(9, "k2 go")


def k2():
    g(f"s_mul_i32 {s(sT4)}, {s(sLAYER)}, {XSZ}")
    g(f"s_sub_u32 s3, {s(sR16)}, {s(sWV)}")
    g(f"s_mul_i32 s3, s3, {20 * KB}")
    g(f"s_add_u32 {s(sT4)}, {s(sT4)}, s3")
    g(f"s_mul_i32 s3, {s(sWV)}, {5 * KB}")
    g(f"s_add_u32 {s(sT4)}, {s(sT4)}, s3")
    g(f"s_add_u32 {s(sT4)}, {s(sT4)}, {OF}")
    reg_gemm(5, 40, 20, 120, lambda i: a(4 * i, 4), sT4, 20, [], False)
    stamp(10, "k2 loop")
    epi_x()
    stamp(11, "k2 epi")
    g(f"s_add_u32 {s(sRTG)}, {s(sRTG)}, 16")
    cs_regs = list(range(40, 60))

    def mid():
        for op in cs_loads(cs_regs, 60, CS3, 2 * 20 * 512):
            op()
        for G in range(EARLY, NRG):
            dma_group(G)
        for op in cs_sum_ops(cs_regs, 60):
            op()
    handoff(1, 1, sRTG, mid=mid, st=12)
    stamp(13, "k3 go")


W4X = 192


def w4reg(i):
    return a(4 * i, 4) if i < 64 else v(W4X + 4 * (i - 64), 4)


def k3():
    ACC, WB, NWB, XW, NXW = 40, 152, 6, 176, 10
    set_xoff_ring()
    side = []
    f = 20
    for op in stats_ops(T):
        side.append((f, op))
        f += 1
    holder = []
    side.append((f, lambda: holder.extend(wpf_ops(70, WF4, 270 * KB, "k4", w4reg))))
    for i in range(0 if OPT.get("NOSIDE") else 64):
        side.append((f + 1 + 3 * i, lambda: holder.pop(0)()))
    ring_gemm(14, ACC, WB, NWB, XW, NXW, lambda nb: True, NRG, 28, [lambda: stats_loads(T)], side, sXOFF)
    stamp(14, "k3 loop")
    for op in holder:
        op()
    CSR = [152, 160, 168, 176, 184, 216, 224]
    NMT, R2 = 232, 236
    tbl_addrs(None, T[1])
    g(f"v_and_b32 {v(T[3])}, 48, {v(vLANE)}")
    g(f"v_add_u32 {v(T[3])}, {CST}, {v(T[3])}")
    for k in range(2):
        g.lg(f"ds_read_b32 {v(NMT + 2 * k)}, {v(T[1])} offset:{64 * k}", tag="e")
        g.lg(f"ds_read_b32 {v(R2 + 2 * k)}, {v(T[1])} offset:{128 + 64 * k}", tag="e")
    for p in range(7):
        g.lg(f"ds_read_b128 {v(CSR[p], 4)}, {v(T[3])} offset:{64 * p}", tag=("c", p))
        g.lg(f"ds_read_b128 {v(CSR[p] + 4, 4)}, {v(T[3])} offset:{512 + 64 * p}", tag=("c", p))
    g(f"s_mul_i32 {s(sT0)}, {s(sLAYER)}, {HSZ}")
    g(f"s_mul_i32 s3, {s(sRA)}, {54 * KB}")
    g(f"s_add_u32 {s(sT0)}, {s(sT0)}, s3")
    g(f"s_add_u32 {s(sT0)}, {s(sT0)}, {HF}")
    g(f"s_mul_i32 s3, {s(sC)}, {3 * KB}")
    g(f"s_add_u32 {s(sT1)}, {s(sT0)}, s3")
    g(f"s_add_u32 {s(sT2)}, {s(sT1)}, {54 * KB}")
    g(f"s_lshl_b32 s3, {s(sCT)}, 10")
    g(f"s_add_u32 {s(sT0)}, {s(sT0)}, s3")
    g(f"s_lshl_b32 s3, {s(sRH)}, 9")
    g(f"s_add_u32 {s(sT0)}, {s(sT0)}, s3")
    g(f"s_add_u32 {s(sT0)}, {s(sT0)}, {46 * KB}")
    g(f"v_and_b32 {v(T[4])}, 15, {v(vLANE)}")
    g(f"v_lshrrev_b32 {v(T[5])}, 5, {v(vLANE)}")
    g(f"v_lshl_add_u32 {v(T[4])}, {v(T[5])}, 4, {v(T[4])}")
    g(f"v_lshlrev_b32 {v(T[4])}, 4, {v(T[4])}")
    g(f"v_bfe_u32 {v(T[5])}, {v(vLANE)}, 4, 1")
    g(f"v_mul_u32_u24 {v(T[5])}, {54 * KB}, {v(T[5])}")
    g(f"v_add_u32 {v(T[4])}, {v(T[4])}, {v(T[5])}")
    g.wait(lg=["e"])
    for k in range(2):
        g(f"v_mul_f32 {v(R2 + 2 * k)}, {v(R2 + 2 * k)}, {v(R2 + 2 * k)}")
    lab = None
    for p in (0, 1, 6, 2, 3, 4, 5):
        if p == 2:
            lab = g.newlabel("c15")
            g.wait(lg=[("c", 6)])
            g(f"s_cmp_eq_u32 {s(sC)}, 15")
            g(f"s_cbranch_scc1 {lab}")
            sv = begin_skip()
        g.wait(lg=[("c", p)])
        for k in range(2):
            G_ = ACC + (4 * p + k) * 4
            U_ = ACC + (4 * p + 2 + k) * 4
            if p == 6:
                dst = ACC + (4 * 6) * 4 + 2 * k
            else:
                dst = ACC + (4 * (p & ~1) + k) * 4 + 2 * (p & 1)
            tm = T[6] if k == 0 else T[8]
            for h in range(2):
                g(f"v_pk_fma_f32 {v(G_ + 2 * h, 2)}, {v(CSR[p] + 2 * h, 2)}, {v(NMT + 2 * k, 2)}, {v(G_ + 2 * h, 2)} {BC1}")
                g(f"v_pk_fma_f32 {v(U_ + 2 * h, 2)}, {v(CSR[p] + 4 + 2 * h, 2)}, {v(NMT + 2 * k, 2)}, {v(U_ + 2 * h, 2)} {BC1}")
            for h in range(2):
                g(f"v_pk_mul_f32 {v(U_ + 2 * h, 2)}, {v(U_ + 2 * h, 2)}, {v(R2 + 2 * k, 2)} op_sel_hi:[1,0]")
            for h in range(2):
                g(f"v_pk_mul_f32 {v(U_ + 2 * h, 2)}, {v(U_ + 2 * h, 2)}, {v(G_ + 2 * h, 2)}")
            if p == 6 and k == 0:
                pass
            for h in range(2):
                g(f"v_cvt_pk_bf16_f32 {v(dst + h)}, {v(U_ + 2 * h)}, {v(U_ + 2 * h + 1)}")
            if p < 6 and p & 1:
                g.vm(f"buffer_store_dwordx4 {v(ACC + (4 * (p - 1) + k) * 4, 4)}, {v(vL16)}, {s(SWS, 4)}, "
                     f"{s((sT1, sT2)[k])} offen offset:{(p >> 1) * 1024} sc1", maybe=(p > 1))
        if p == 6:
            d = ACC + 24 * 4
            g(f"v_permlane16_swap_b32 {v(d)}, {v(d + 2)}")
            g(f"v_permlane16_swap_b32 {v(d + 1)}, {v(d + 3)}")
            g.vm(f"buffer_store_dwordx4 {v(d, 4)}, {v(T[4])}, {s(SWS, 4)}, {s(sT0)} offen sc1")
    end_skip(sv)
    g.label(lab)
    stamp(15, "k3 epi")
    g(f"s_add_u32 {s(sRTG)}, {s(sRTG)}, 16")
    handoff(1, 1, sRTG, st=16)
    stamp(17, "k4 go")


def k4():
    g(f"s_mul_i32 {s(sT4)}, {s(sLAYER)}, {HSZ}")
    g(f"s_sub_u32 s3, {s(sR16)}, {s(sWV)}")
    g(f"s_mul_i32 s3, s3, {54 * KB}")
    g(f"s_add_u32 {s(sT4)}, {s(sT4)}, s3")
    g(f"s_mul_i32 s3, {s(sWV)}, 14")
    g(f"s_cmp_eq_u32 {s(sWV)}, 3")
    g(f"s_cselect_b32 s3, 41, s3")
    g(f"s_lshl_b32 s3, s3, 10")
    g(f"s_add_u32 {s(sT4)}, {s(sT4)}, s3")
    g(f"s_add_u32 {s(sT4)}, {s(sT4)}, {HF}")
    g(f"s_cmp_ge_u32 {s(sWV)}, 2")
    g(f"s_cselect_b32 {s(sX14)}, 12, 13")
    g(f"s_lshl_b32 {s(sX14)}, {s(sX14)}, 10")
    g(f"s_cmp_eq_u32 {s(sLAYER)}, 0")
    g(f"s_cselect_b32 {s(SPF + 2)}, {WS_END}, 0")
    set_goff(WF1, 160 * KB, 0)
    side = [lambda G=G: dma_group(G, srd=SPF) for G in range(EARLY)]
    reg_gemm(14, 40, 28, 152, w4reg, sT4, 54, side, True)
    stamp(18, "k4 loop")
    g(f"s_cmp_eq_u32 {s(sLAYER)}, 1")
    g("s_cbranch_scc1 L_final")
    g(f"s_mov_b32 {s(sLAYER)}, 1")
    g(f"s_add_u32 {s(sRTG)}, {s(sRTG)}, 16")
    g.fence()
    g.label("L_epi4_x")
    epi_x()
    stamp(19, "k4 epi")

    def pre_arrive():
        lp, lo = g.newlabel("ipoll"), g.newlabel("ipollout")
        set_aux(P_DBG, 256)
        g(f"v_mov_b32 {v(T[8])}, 0")
        g(f"s_mov_b32 {s(sITER)}, 0")
        g.label(lp)
        g(f"buffer_load_dword {v(T[9])}, {v(T[8])}, {s(SAUX, 4)}, 0 offen sc1")
        g(f"s_add_u32 {s(sITER)}, {s(sITER)}, 1")
        g(f"s_cmp_gt_u32 {s(sITER)}, 0x40000")
        g(f"s_cbranch_scc1 {lo}")
        g("s_waitcnt vmcnt(0)")
        g(f"v_cmp_eq_u32 vcc, 0, {v(T[9])}")
        g("s_nop 0")
        g(f"s_cbranch_vccnz {lp}")
        g.label(lo)
        g("s_waitcnt vmcnt(0)")

    def pre_arrive_guard():
        lab = g.newlabel("noipoll")
        g(f"s_cmp_lg_u32 {s(sLAYER)}, 0")
        g(f"s_cbranch_scc1 {lab}")
        pre_arrive()
        g.label(lab)

    def mid():
        lab = g.newlabel("nomid")
        g(f"s_cmp_eq_u32 {s(sLAYER)}, 0")
        g(f"s_cbranch_scc1 {lab}")
        sv = begin_skip()
        q = list(g.vmq)
        for G in range(EARLY, NRG):
            dma_group(G)
        g.vmq = q
        end_skip(sv)
        g.label(lab)
    handoff((sAM,), (sWM,), sRTG, mid=mid, pre_arrive=pre_arrive_guard, st=20)
    stamp(21, "polled")
    g(f"s_mov_b64 {s(sAM, 2)}, 1")
    g(f"s_mov_b64 {s(sWM, 2)}, 1")
    if STAMPS:
        g(f"s_add_u32 {s(sSIDX)}, {s(sSIDX)}, 20")
    g(f"s_cmp_lg_u32 {s(sLAYER)}, 0")
    g("s_cbranch_scc1 L_k1")
    set_goff(WF1, 160 * KB, 0)
    for G in range(NRG):
        dma_group(G)
    g.fence()
    g("s_branch L_k1")
    g.label("L_final")
    g.nop(2)
    epi_pack()
    set_aux(P_OUT, 2048 * 1280)
    g(f"v_and_b32 {v(T[0])}, 15, {v(vLANE)}")
    g(f"v_mul_u32_u24 {v(T[0])}, 1280, {v(T[0])}")
    g(f"v_bfe_u32 {v(T[1])}, {v(vLANE)}, 4, 1")
    g(f"v_lshl_add_u32 {v(T[0])}, {v(T[1])}, 5, {v(T[0])}")
    g(f"v_lshrrev_b32 {v(T[1])}, 5, {v(vLANE)}")
    g(f"v_lshl_add_u32 {v(T[0])}, {v(T[1])}, 4, {v(T[0])}")
    g(f"s_mul_i32 {s(sT0)}, {s(sR16)}, {16 * 1280}")
    g(f"s_mul_i32 {s(sT1)}, {s(sCT)}, 160")
    g(f"s_add_u32 {s(sT0)}, {s(sT0)}, {s(sT1)}")
    for i in range(3):
        g(f"v_permlane16_swap_b32 {v(PK + 4 * i)}, {v(PK + 4 * i + 2)}")
        g(f"v_permlane16_swap_b32 {v(PK + 4 * i + 1)}, {v(PK + 4 * i + 3)}")
    g(f"buffer_store_dwordx4 {v(PK, 4)}, {v(T[0])}, {s(SAUX, 4)}, {s(sT0)} offen")
    g(f"buffer_store_dwordx4 {v(PK + 4, 4)}, {v(T[0])}, {s(SAUX, 4)}, {s(sT0)} offen offset:64")
    g("s_mov_b32 exec_lo, 0xffff")
    g("s_mov_b32 exec_hi, 0xffff")
    g(f"buffer_store_dwordx4 {v(PK + 8, 4)}, {v(T[0])}, {s(SAUX, 4)}, {s(sT0)} offen offset:128")
    g("s_mov_b64 exec, -1")
    if STAMPS:
        g("s_waitcnt vmcnt(0)")
        stamp(19, "k4 epi")
        lab = g.newlabel("nost")
        g(f"s_cmp_lg_u32 {s(sWV)}, 0")
        g(f"s_cbranch_scc1 {lab}")
        g(f"s_lshl_b32 s3, s2, 8")
        g(f"s_add_u32 s3, s3, {STAMP}")
        g(f"v_lshlrev_b32 {v(T[0])}, 2, {v(vLANE)}")
        g(f"buffer_store_dword {v(vSTAMP)}, {v(T[0])}, {s(SWS, 4)}, s3 offen")
        if OPT.get("DBGOUT"):
            g(f"s_cmp_lg_u32 s2, {OPT['DBGOUT']}")
            g(f"s_cbranch_scc1 {lab}")
            sel = [1, 20, 21, 22, 23, 24, 29, 33, 34, 38, 42, 43, 54, 58, 59]
            g(f"v_mov_b32 {v(T[1])}, 0")
            for i, x in enumerate(sel):
                g(f"s_mov_b32 s3, {4 * x}")
                g(f"v_writelane_b32 {v(T[1])}, s3, {i + 1}")
            g(f"v_readlane_b32 s3, {v(vSTAMP)}, 0")
            g.nop(2)
            g(f"v_subrev_u32 {v(T[2])}, s3, {v(vSTAMP)}")
            g(f"ds_bpermute_b32 {v(T[3])}, {v(T[1])}, {v(T[2])}")
            set_aux(P_DBG, 256)
            g("s_waitcnt lgkmcnt(0)")
            g("s_mov_b64 exec, 0xfffe")
            g(f"buffer_store_dword {v(T[3])}, {v(T[0])}, {s(SAUX, 4)}, 0 offen")
        g.label(lab)
    g.label("L_end")
    g("s_endpgm")


def build():
    prologue()
    prep()
    g.vmq = [(("G", G), False) for G in range(NRG) for _ in range(2)]
    g.lgq = []
    k1()
    k2()
    k3()
    k4()
    head = open("cdna_kernels/" + NAME + ".s.ref").read().splitlines()
    hdr = [l for l in head[:12] if l.startswith(";") and "@launch" not in l]
    out = "\n".join(hdr) + f"\n; @launch grid=(256,1,1) block=(256,1,1) lds={LDS_BYTES}\n"
    out += '.amdgcn_target "amdgcn-amd-amdhsa--gfx950"\n.text\n'
    out += f".globl {NAME}_kernel\n.p2align 8\n.type {NAME}_kernel,@function\n{NAME}_kernel:\n"
    out += g.text()
    out += f'.section .rodata,"a"\n.p2align 6\n.amdhsa_kernel {NAME}_kernel\n'
    out += f"  .amdhsa_next_free_vgpr 512\n  .amdhsa_next_free_sgpr {NSGPR}\n  .amdhsa_accum_offset 256\n"
    out += "  .amdhsa_group_segment_fixed_size 0\n  .amdhsa_kernarg_size 80\n  .amdhsa_user_sgpr_count 2\n"
    out += "  .amdhsa_user_sgpr_kernarg_segment_ptr 1\n  .amdhsa_system_sgpr_workgroup_id_x 1\n"
    out += "  .amdhsa_float_denorm_mode_32 3\n"
    out += ".end_amdhsa_kernel\n"
    return out


if __name__ == "__main__":
    path = [x for x in sys.argv[1:] if not x.startswith("-")]
    path = path[0] if path else "cdna_kernels/" + NAME + ".s"
    text = build()
    open(path, "w").write(text)
    import json
    LAYOUT["STAMP_NAMES"] = STAMP_NAMES
    if STAMPS:
        json.dump(LAYOUT, open("layout.json", "w"))
    print(f"wrote {path}: {g.n_instr} instructions, ws bytes {WS_END}")
```
